```python
import torch

def _softmax(x, axis=-1):
    return torch.softmax(x, dim=axis)

def _gelu(x):
    return torch.nn.functional.gelu(x, approximate='tanh')

def _silu(x):
    return torch.nn.functional.silu(x)

def _sigmoid(x):
    return torch.sigmoid(x)

def _layernorm(x, axis=-1, eps=1e-05):
    m = x.mean(dim=axis, keepdim=True)
    v = x.var(dim=axis, keepdim=True, unbiased=False)
    return (x - m) / torch.sqrt(v + eps)

def _scatter_add(tgt, idx, src, axis=0):
    return tgt.clone().index_add_(axis, idx, src)

def _segment_sum(src, seg, n):
    out = torch.zeros((n,) + src.shape[1:], dtype=src.dtype)
    return out.index_add_(0, seg, src)

def _pad(x, pw):
    flat = tuple((v for pair in reversed(pw) for v in pair))
    return torch.nn.functional.pad(x, flat)
kernel_name = 'gated_mix__memory_aug_recurrent_mem_tr__dense_activation_silu__prompt'

def setup_inputs():

    _w = lambda a: (lambda t: t.to(torch.bfloat16) if t.is_floating_point() else t)(torch.as_tensor(a))

    def _A_setup():
        B, S, Dm = (1, 2048, 512)
        H, Dh = (32, 128)
        M, seg = (8, 32)
        seg = min(seg, S)
        S = S // seg * seg
        return {'x': _w((lambda *s: torch.randn(*s, dtype=torch.bfloat16) * 0.05)(B, S, Dm)), 'mem0': _w((lambda *s: torch.randn(*s, dtype=torch.bfloat16) * 0.4)(B, M, Dm)), 'Wq': _w((lambda *s: torch.randn(*s, dtype=torch.bfloat16) * 6.4)(Dm, H, Dh) * Dm ** (-0.5)), 'Wk': _w((lambda *s: torch.randn(*s, dtype=torch.bfloat16) * 6.4)(Dm, H, Dh) * Dm ** (-0.5)), 'Wv': _w((lambda *s: torch.randn(*s, dtype=torch.bfloat16) * 0.4)(Dm, H, Dh) * Dm ** (-0.5)), 'Wo': _w((lambda *s: torch.randn(*s, dtype=torch.bfloat16) * 0.4)(H, Dh, Dm) * (H * Dh) ** (-0.5)), 'seg_len': seg}
    _A_in = _A_setup()

    def _B_setup():
        B, S, D, F = (1, 2048, 512, 1376)
        return {'x': _w((lambda *s: torch.randn(*s, dtype=torch.bfloat16) * 0.05)(B, S, D)), 'w1': _w((lambda *s: torch.randn(*s, dtype=torch.bfloat16) * 3.2)(D, F) * D ** (-0.5)), 'w2': _w((lambda *s: torch.randn(*s, dtype=torch.bfloat16) * 0.2)(F, D) * F ** (-0.5))}
    _B_in = _B_setup()
    return {'A_x': _A_in['x'], 'A_mem0': _A_in['mem0'], 'A_Wq': _A_in['Wq'], 'A_Wk': _A_in['Wk'], 'A_Wv': _A_in['Wv'], 'A_Wo': _A_in['Wo'], 'A_seg_len': _A_in['seg_len'], 'B_x': _B_in['x'], 'B_w1': _B_in['w1'], 'B_w2': _B_in['w2'], 'gate_w': _w((lambda *s: torch.randn(*s, dtype=torch.bfloat16) * 0.05)(512) * 16.0)}

def reference(A_x, A_mem0, A_Wq, A_Wk, A_Wv, A_Wo, A_seg_len, B_x, B_w1, B_w2, gate_w):

    def _A_ref(x, mem0, Wq, Wk, Wv, Wo, seg_len):
        B, S, Dm = x.shape
        H, Dh = (Wq.shape[1], Wq.shape[2])
        M = mem0.shape[1]
        scale = Dh ** (-0.5)
        n_seg = S // seg_len
        L = M + seg_len
        idx = torch.arange(L)
        mask = (idx[:, None] < M) | (idx[:, None] >= idx[None, :])
        mem = mem0
        outs = []
        for s in range(n_seg):
            xs = x[:, s * seg_len:(s + 1) * seg_len, :].clone()
            h = torch.concatenate([mem, xs], axis=1)
            q = torch.einsum('btd,dhe->bhte', h, Wq)
            k = torch.einsum('btd,dhe->bhte', h, Wk)
            v = torch.einsum('btd,dhe->bhte', h, Wv)
            scores = torch.einsum('bhqe,bhke->bhqk', q, k) * scale
            scores = torch.where(mask[None, None], scores, -1000000000.0)
            p = _softmax(scores, axis=-1)
            o = torch.einsum('bhqk,bhke->bhqe', p, v)
            o = torch.einsum('bhte,hed->btd', o, Wo)
            mem = o[:, :M, :].clone()
            outs.append(o[:, M:, :])
        return torch.concatenate(outs, axis=1)

    def _B_ref(x, w1, w2):
        h = torch.einsum('bsd,df->bsf', x, w1)
        h = _silu(h)
        out = torch.einsum('bsf,fd->bsd', h, w2)
        return out
    x = A_x
    g = _sigmoid((x * gate_w).sum(-1, keepdims=True))
    a = _A_ref(x, A_mem0, A_Wq, A_Wk, A_Wv, A_Wo, A_seg_len)
    b = _B_ref(x, B_w1, B_w2)
    return g * a + (1 - g) * b
```

```python
import re

class Asm:
    def __init__(self):
        self.L = []
        self.uid = 0
    def __call__(self, s):
        for line in s.split('\n'):
            t = line.strip()
            if t: self.L.append(t)
    def label(self, name):
        self.L.append(name + ':')
    def newlabel(self, p='L'):
        self.uid += 1
        return f'{p}_{self.uid}'
    def text(self):
        return '\n'.join(self.L)

def vr(b, n=1, t='v'):
    return f'{t}{b}' if n == 1 else f'{t}[{b}:{b+n-1}]'
def ar(b, n=1): return vr(b, n, 'a')
def sr(b, n=1): return vr(b, n, 's')

_reg_re = re.compile(r'^(v|a|s)(\d+)$')
_rng_re = re.compile(r'^(v|a|s)\[(\d+):(\d+)\]$')
def parse_reg(tok):
    tok = tok.strip()
    if tok.startswith('-') : tok = tok[1:]
    if tok.startswith('|') and tok.endswith('|'): tok = tok[1:-1]
    m = _reg_re.match(tok)
    if m: return {(m.group(1), int(m.group(2)))}
    m = _rng_re.match(tok)
    if m: return {(m.group(1), i) for i in range(int(m.group(2)), int(m.group(3)) + 1)}
    if tok == 'vcc': return {('s', 'vcc_lo'), ('s', 'vcc_hi')}
    if tok in ('vcc_lo', 'vcc_hi'): return {('s', tok)}
    if tok == 'exec': return {('s', 'exec_lo'), ('s', 'exec_hi')}
    if tok in ('exec_lo', 'exec_hi'): return {('s', tok)}
    if tok == 'm0': return {('s', 'm0')}
    if tok == 'scc': return set()
    return set()

TRANS = ('v_exp_f32', 'v_log_f32', 'v_rcp_f32', 'v_rsq_f32', 'v_sqrt_f32', 'v_sin_f32', 'v_cos_f32', 'v_rcp_iflag_f32')
def split_ops(s):
    out = []; d = 0; cur = ''
    for ch in s:
        if ch == '[': d += 1
        if ch == ']': d -= 1
        if ch == ',' and d == 0:
            out.append(cur.strip()); cur = ''
        else: cur += ch
    if cur.strip(): out.append(cur.strip())
    return out

class Ins:
    __slots__ = ('raw', 'mn', 'ops', 'mods', 'kind', 'dst', 'src', 'srcA', 'srcB', 'srcC', 'passes', 'label', 'target', 'ws', 'trans', 'wide_store', 'lds_dma', 'opsel')
    def __init__(self, raw):
        self.raw = raw
        self.label = None; self.target = None; self.kind = None
        self.dst = set(); self.src = set(); self.srcA = set(); self.srcB = set(); self.srcC = set()
        self.passes = 0; self.ws = 1; self.trans = False; self.wide_store = False; self.lds_dma = False; self.opsel = False
        t = raw.split(';')[0].strip()
        if t == '' or t.startswith('.') or t.startswith('//'):
            self.kind = 'none'; self.ws = 0; self.mn = ''; return
        if t.endswith(':'):
            self.kind = 'label'; self.label = t[:-1]; self.ws = 0; self.mn = ''; return
        p = t.split(None, 1)
        mn = p[0]; self.mn = mn
        rest = p[1] if len(p) > 1 else ''
        ops = split_ops(rest)
        mods = []
        if ops:
            lp = ops[-1].split()
            ops[-1] = lp[0]; mods = lp[1:]
        self.ops = ops; self.mods = mods
        R = [parse_reg(o) for o in ops]
        base = re.sub(r'_(e32|e64|dpp|sdwa)$', '', mn)
        if mn == 's_nop':
            self.kind = 'salu'; self.ws = int(ops[0], 0) + 1; return
        if mn.startswith('s_cbranch') or mn == 's_branch':
            self.kind = 'branch'; self.target = ops[0]; return
        if mn in ('s_endpgm',):
            self.kind = 'end'; return
        if mn.startswith('s_load') or mn.startswith('s_memtime') or mn.startswith('s_memrealtime') or mn.startswith('s_buffer_load'):
            self.kind = 'smem'; self.dst = R[0];
            for r in R[1:]: self.src |= r
            return
        if mn.startswith('s_'):
            self.kind = 'salu'
            if mn in ('s_waitcnt', 's_barrier', 's_sleep', 's_setprio') or mn.startswith('s_cmp') or mn.startswith('s_bitcmp'):
                for r in R: self.src |= r
                return
            if R: self.dst = set(R[0])
            for r in R[1:]: self.src |= r
            if 'saveexec' in mn: self.dst |= parse_reg('exec'); self.src |= parse_reg('exec')
            return
        if mn.startswith('v_mfma') or mn.startswith('v_smfmac'):
            self.kind = 'mfma'
            self.passes = 8 if '32x32' in mn else 4
            self.dst = R[0]; self.srcA = R[1]; self.srcB = R[2]
            if mn.startswith('v_smfmac'):
                self.srcC = set(R[0]); self.srcB = self.srcB | R[3]
            else:
                self.srcC = R[3]
            self.src = self.srcA | self.srcB | self.srcC
            return
        if mn.startswith('v_'):
            self.kind = 'valu'
            self.trans = base in TRANS
            if any(m.startswith('op_sel') or m.startswith('dst_sel') for m in mods): self.opsel = True
            if base.startswith('v_cmpx'): raise Exception('no v_cmpx please')
            if base.startswith('v_permlane') and 'swap' in base:
                self.dst = R[0] | R[1]; self.src = R[0] | R[1]; return
            if base == 'v_swap_b32':
                self.dst = R[0] | R[1]; self.src = R[0] | R[1]; return
            self.dst = set(R[0])
            k = 1
            if base in ('v_add_co_u32', 'v_addc_co_u32', 'v_sub_co_u32', 'v_subb_co_u32', 'v_subrev_co_u32', 'v_div_scale_f32', 'v_mad_u64_u32'):
                self.dst |= R[1]; k = 2
            for r in R[k:]: self.src |= r
            if base in ('v_fmac_f32', 'v_mac_f32', 'v_pk_fmac_f16', 'v_writelane_b32', 'v_dot2c_f32_bf16', 'v_fmac_f16') : self.src |= R[0]
            if 'dpp' in mn or any(m.startswith('row_') or m.startswith('quad_perm') or m.startswith('wave_') for m in mods): self.src |= R[0]
            if base == 'v_cndmask_b32' and len(ops) == 3: self.src |= parse_reg('vcc')
            if base in ('v_addc_co_u32','v_subb_co_u32') and len(ops) == 4: self.src |= parse_reg('vcc')
            if self.opsel: self.src |= R[0]
            return
        if mn.startswith('ds_'):
            self.kind = 'ds'
            if mn.startswith('ds_read') or mn.startswith('ds_bpermute') or mn.startswith('ds_permute') or mn.startswith('ds_swizzle') or '_rtn' in mn:
                self.dst = R[0]
                for r in R[1:]: self.src |= r
            else:
                for r in R: self.src |= r
            return
        if mn.startswith('global_') or mn.startswith('buffer_') or mn.startswith('flat_'):
            self.kind = 'vmem'
            if '_lds_' in mn or 'lds' in mods:
                self.lds_dma = True
                for r in R: self.src |= r
                self.src |= parse_reg('m0')
                return
            if 'load' in mn:
                self.dst = R[0]
                for r in R[1:]: self.src |= r
            elif 'atomic' in mn:
                if 'sc0' in mods and mn.startswith('global_'):
                    self.dst = R[0]
                    for r in R[1:]: self.src |= r
                else:
                    for r in R: self.src |= r
            else:
                for r in R: self.src |= r
                if 'x3' in mn or 'x4' in mn:
                    self.wide_store = True
                    self.srcB = R[1] if mn.startswith('global_') else R[0]
            return
        raise Exception('unknown instr ' + raw)

def is_v(rs): return {r for r in rs if r[0] in 'va'}
def is_s(rs): return {r for r in rs if r[0] == 's'}

def need(p, c):
    n = 0
    if p.kind == 'valu':
        pv = is_v(p.dst); ps = is_s(p.dst)
        if c.kind == 'mfma' and (pv & c.src): n = max(n, 2)
        if c.kind == 'valu':
            b = c.mn
            if (b.startswith('v_permlane') or 'dpp' in b or any(m.startswith('row_') or m.startswith('quad_perm') or m.startswith('wave_') for m in c.mods)) and (pv & c.src): n = max(n, 2)
            if (b.startswith('v_readfirstlane') or b.startswith('v_readlane')) and (pv & c.src): n = max(n, 1)
            if p.trans and not c.trans and (pv & c.src): n = max(n, 1)
            if p.opsel and (pv & (c.src | c.dst)): n = max(n, 1)
            if ps & c.src:
                n = max(n, 4 if (b.startswith('v_readlane') or b.startswith('v_writelane')) else 2)
        if c.kind == 'vmem' and (ps & c.src): n = max(n, 5)
        if c.kind == 'mfma' and (ps & parse_reg('exec')): n = max(n, 4)
    if p.kind == 'salu':
        if ('s', 'm0') in p.dst and c.lds_dma: n = max(n, 1)
    if p.kind == 'mfma':
        big = p.passes == 8
        if c.kind == 'mfma':
            if p.dst & c.srcC:
                if p.dst == c.srcC and p.passes == c.passes: pass
                else: n = max(n, 10 if big else 6)
            if p.dst & (c.srcA | c.srcB): n = max(n, 12 if big else 8)
            if (p.dst & c.dst) and not (p.dst & c.srcC): n = max(n, 10 if big else 6)
        elif c.kind in ('valu',):
            if p.dst & (c.src | c.dst): n = max(n, 12 if big else 8)
            if p.srcC & c.dst: n = max(n, 7 if big else 3)
        elif c.kind in ('vmem', 'ds'):
            if p.dst & (c.src | c.dst): n = max(n, 12 if big else 8)
    if p.kind == 'vmem' and p.wide_store:
        if c.kind == 'valu' and (p.srcB & c.dst): n = max(n, 2)
        elif c.kind in ('vmem', 'ds', 'mfma') and (p.srcB & c.dst): n = max(n, 1)
    return n

def fix_hazards(lines, verbose=False):
    ins = [Ins(l) for l in lines]
    labels = {}
    for i, x in enumerate(ins):
        if x.kind == 'label': labels[x.label] = i
    br_to = {}
    for i, x in enumerate(ins):
        if x.kind == 'branch':
            br_to.setdefault(labels[x.target], []).append(i)
    extra = [0] * len(ins)
    WIN = 13
    total = 0
    def nofall(x):
        return x.kind == 'end' or (x.kind == 'branch' and x.mn == 's_branch')
    for i, c in enumerate(ins):
        if c.kind in ('none', 'label', 'branch', 'end', 'salu', 'smem'): continue
        best = 0
        stack = []
        if i > 0 and not nofall(ins[i-1]): stack.append((i - 1, 0))
        seen = {}
        while stack:
            j, d = stack.pop()
            while True:
                if seen.get(j, 99) <= d: break
                seen[j] = d
                p = ins[j]
                if p.kind == 'label':
                    for b in br_to.get(j, []): stack.append((b, d))
                elif p.kind != 'none':
                    r = need(p, c)
                    if r > d: best = max(best, r - d)
                    d += p.ws + extra[j]
                if d >= WIN: break
                if j == 0 or nofall(ins[j-1]): break
                j -= 1
        if best > 0:
            extra[i] = best; total += best
    out = []
    for i, x in enumerate(ins):
        e = extra[i]
        while e > 0:
            k = min(e, 16)
            out.append(f's_nop {k-1}'); e -= k
        out.append(x.raw)
    if verbose: print('hazard nops inserted:', total, 'states at', sum(1 for e in extra if e), 'places')
    return out
```

```python
from gen import *
import gen as G

IMG = 0
KXS = 131072
VXS = KXS + 8192
MEMB = 147456
QKB = MEMB + 8448
RS = 40
OB = QKB + 128 * RS
assert OB + 8 * 288 <= 163840 - 64
STG = 131072

V_MA, V_IDX, V_IMG, V_QW, V_QR, V_KR, V_VR, V_OW, V_OR, V_HA, V_RL, V_HB, V_ML, V_MW, V_KMR, V_KMS, V_VMS, V_DMA = range(1, 19)
SEL = 20; ONES = 24; BIAS = 28; POIS = 32
T = 36
POOL = 40
AM = 64
WQK = 128

def poll_ge(A, s_off, s_need, vt=T):
    L = A.newlabel('L_pl'); Lo = A.newlabel('L_plo')
    A(f'''
v_mov_b32 v{vt}, s{s_off}
s_mov_b32 s45, 0
{L}:
global_load_dword v{vt+1}, v{vt}, {SP(S_WS)} sc1
s_add_u32 s45, s45, 1
s_waitcnt vmcnt(0)
v_readfirstlane_b32 s44, v{vt+1}
s_cmp_ge_u32 s44, s{s_need}
s_cbranch_scc1 {Lo}
s_cmp_lt_u32 s45, 300000
s_cbranch_scc1 {L}
{Lo}:
''')

def kv_dma(A, s_seg):
    A(f'''
s_mul_i32 s46, s{s_seg}, 171
s_lshr_b32 s46, s46, 9               ; s/3
s_mul_i32 s47, s46, 3
s_sub_u32 s47, s{s_seg}, s47         ; rho
s_add_u32 s46, s46, 1                ; need
s_lshl_b32 s47, s47, 2
s_lshl_b32 s50, s{S_H}, 7
s_add_u32 s47, s47, s50
s_add_u32 s47, s47, {F_KV}
''')
    poll_ge(A, 47, 46)
    A(f'''
s_lshl_b32 s50, s{s_seg}, 18
s_lshl_b32 s51, s{S_H}, 13
s_add_u32 s50, s50, s51
s_add_u32 s50, s50, {KX}
s_add_u32 s50, s{S_WS}, s50
s_addc_u32 s51, s{S_WS+1}, 0
s_add_u32 s52, s50, {VX-KX}
s_addc_u32 s53, s51, 0
s_lshl_b32 s46, s{S_WAVE}, 11
s_add_u32 m0, s46, {KXS}
s_nop 0
global_load_lds_dwordx4 v{V_DMA}, s[50:51] sc1
global_load_lds_dwordx4 v{V_DMA}, s[50:51] offset:1024 sc1
s_add_u32 m0, s46, {VXS}
s_nop 0
global_load_lds_dwordx4 v{V_DMA}, s[52:53] sc1
global_load_lds_dwordx4 v{V_DMA}, s[52:53] offset:1024 sc1
''')

def chain_role(A, cfg):
    G.STV[:] = [38, 39]
    A('L_chain_pro:')
    A(f'''
s_mov_b32 s{S_H}, s{S_G}
v_lshrrev_b32 v36, 4, v0              ; g
v_and_b32 v37, 15, v0                 ; n / m
v_lshrrev_b32 v38, 2, v37             ; r = n>>2
v_and_b32 v39, 3, v37                 ; c = n&3
''')
    g, n, r, c = 36, 37, 38, 39
    P_GO0, P_GO1, P_LW, P_TRQ, P_TRV, P_TRO, P_GOO0, P_GOO1, P_GV0, P_GV1 = range(40, 50)
    A(f'''
s_lshl_b32 s34, s{S_WAVE}, 3
v_add_u32 v50, s34, v{g}
v_mul_u32_u24 v{P_LW}, {STG_ROW}, v50
v_lshlrev_b32 v51, 4, v{n}
v_add_u32 v{P_LW}, v{P_LW}, v51
v_lshlrev_b32 v{P_GV0}, 13, v50
v_add_u32 v{P_GV0}, v{P_GV0}, v51
v_add_u32 v{P_GV1}, 0x8000, v{P_GV0}
v_lshlrev_b32 v{P_GOO0}, 10, v50
v_add_u32 v{P_GOO0}, v{P_GOO0}, v51
v_add_u32 v{P_GOO1}, 0x1000, v{P_GOO0}
s_and_b32 s35, s34, 15
v_add_u32 v50, s35, v{g}
v_lshlrev_b32 v{P_GO0}, 13, v50
v_add_u32 v{P_GO0}, v{P_GO0}, v51
v_add_u32 v{P_GO1}, 0x8000, v{P_GO0}
v_and_b32 v52, 1, v{r}
v_lshrrev_b32 v53, 1, v{r}
v_lshlrev_b32 v54, 2, v{g}
v_add_u32 v54, v54, v52               ; 4g + rlo
v_lshlrev_b32 v55, 3, v{c}            ; 4c*2 bytes
s_lshl_b32 s35, s{S_WAVE}, 6          ; 32w*2
v_lshlrev_b32 v56, 4, v53
v_add_u32 v56, v56, v54
v_mul_u32_u24 v{P_TRQ}, {STG_ROW}, v56
v_add_u32 v{P_TRQ}, v{P_TRQ}, v55
v_add_u32 v{P_TRQ}, s35, v{P_TRQ}
v_mul_u32_u24 v57, {STG_ROW}, v54
v_add_u32 v57, v57, v55
v_lshlrev_b32 v58, 5, v53
v_add_u32 v{P_TRV}, v57, v58
v_add_u32 v{P_TRV}, s35, v{P_TRV}
v_lshlrev_b32 v58, 6, v53
v_add_u32 v{P_TRO}, v57, v58
v_add_u32 v{P_TRO}, {STG}, v{P_TRO}
v_add_u32 v{P_TRV}, {STG}, v{P_TRV}
v_add_u32 v{P_TRQ}, {STG}, v{P_TRQ}
v_add_u32 v{P_LW}, {STG}, v{P_LW}
''')
    A(f'''
v_and_b32 v50, 7, v{n}                ; m&7
v_lshlrev_b32 v51, 4, v{g}            ; g*16
v_mul_u32_u24 v{V_MA}, 1056, v50
v_add_u32 v{V_MA}, v{V_MA}, v51
v_add_u32 v{V_MA}, {MEMB}, v{V_MA}
v_cmp_gt_u32 s[60:61], 8, v{n}        ; lanes n<8
v_cmp_le_u32 s[62:63], 8, v{n}        ; lanes n>=8
v_mov_b32 v{V_IDX}, 0xeeee
v_mov_b32 v52, 0x4444
v_cndmask_b32 v{V_IDX}, v{V_IDX}, v52, s[60:61]
v_lshlrev_b32 v52, 4, v0              ; lane*16
s_lshl_b32 s34, s{S_WAVE}, 15
v_add_u32 v{V_IMG}, s34, v52
; qk write: QKB + (32w+n)*RS + g*8
s_lshl_b32 s34, s{S_WAVE}, 5
v_add_u32 v53, s34, v{n}
v_mul_u32_u24 v{V_QW}, {RS}, v53
v_lshlrev_b32 v54, 3, v{g}
v_add_u32 v{V_QW}, v{V_QW}, v54
v_add_u32 v{V_QW}, {QKB}, v{V_QW}
; qk tr read: QKB + (4g + r)*RS + c*8
v_lshlrev_b32 v53, 2, v{g}
v_add_u32 v53, v53, v{r}
v_mul_u32_u24 v{V_QR}, {RS}, v53
v_lshlrev_b32 v54, 3, v{c}
v_add_u32 v{V_QR}, v{V_QR}, v54
v_add_u32 v{V_QR}, {QKB}, v{V_QR}
s_mul_i32 s34, s{S_WAVE}, {32*RS}
v_add_u32 v{V_KMR}, s34, v{V_QR}
v_add_u32 v{V_KR}, {KXS}, v52
s_lshl_b32 s34, s{S_WAVE}, 11
s_add_u32 s35, s34, {VXS}
v_add_u32 v{V_VR}, s35, v52
v_add_u32 v{V_DMA}, s34, v52
v_mul_u32_u24 v{V_OW}, 288, v{n}
v_lshlrev_b32 v54, 3, v{g}
v_add_u32 v{V_OW}, v{V_OW}, v54
s_lshl_b32 s34, s{S_WAVE}, 6
s_add_u32 s34, s34, {OB}
v_add_u32 v{V_OW}, s34, v{V_OW}
v_mul_u32_u24 v{V_OR}, 288, v50
v_add_u32 v{V_OR}, v{V_OR}, v51
v_add_u32 v{V_OR}, {OB}, v{V_OR}
s_lshl_b32 s34, s{S_WAVE}, 3
v_add_u32 v53, s34, v{g}
v_lshlrev_b32 v{V_HA}, 13, v53
v_lshlrev_b32 v54, 4, v{n}
v_add_u32 v{V_HA}, v{V_HA}, v54
s_lshl_b32 s34, s{S_H}, 8
v_add_u32 v{V_HA}, s34, v{V_HA}
s_lshl_b32 s34, s{S_H}, 13
v_add_u32 v{V_RL}, s34, v52
s_and_b32 s34, s{S_H}, 1
s_lshl_b32 s34, s34, 2
v_add_u32 v53, s34, v{c}
v_lshlrev_b32 v{V_HB}, 10, v53
s_lshr_b32 s34, s{S_H}, 1
s_lshl_b32 s34, s34, 6
v_add_u32 v{V_HB}, s34, v{V_HB}
v_and_b32 v53, 1, v{r}
v_lshlrev_b32 v53, 5, v53
v_add_u32 v{V_HB}, v{V_HB}, v53
v_lshlrev_b32 v53, 3, v{g}
v_add_u32 v{V_HB}, v{V_HB}, v53
s_lshl_b32 s34, s{S_WAVE}, 11
v_add_u32 v{V_ML}, s34, v52
s_mul_i32 s34, s{S_WAVE}, 2112
s_add_u32 s34, s34, {MEMB}
v_add_u32 v{V_MW}, s34, v52
s_lshl_b32 s34, s{S_H}, 11
s_lshl_b32 s35, s{S_WAVE}, 9
s_add_u32 s34, s34, s35
v_lshlrev_b32 v53, 7, v{g}
v_and_b32 v54, 7, v{n}
v_lshlrev_b32 v54, 4, v54
v_add_u32 v53, v53, v54
v_add_u32 v{V_KMS}, s34, v53
v_lshlrev_b32 v53, 3, v0
v_add_u32 v{V_VMS}, s34, v53
; constants
v_mov_b32 v{ONES}, 0x3f803f80
v_mov_b32 v{ONES+1}, 0x3f803f80
v_mov_b32 v{ONES+2}, 0x3f803f80
v_mov_b32 v{ONES+3}, 0x3f803f80
v_mov_b32 v{POIS}, -1
v_mov_b32 v{POIS+1}, -1
v_mov_b32 v{POIS+2}, -1
v_mov_b32 v{POIS+3}, -1
v_mov_b32 v53, 0xf149f2ca             ; -1e30
v_cmp_gt_u32 vcc, 2, v{g}
v_cndmask_b32 v{BIAS}, 0, v53, vcc
v_mov_b32 v{BIAS+1}, v{BIAS}
v_mov_b32 v{BIAS+2}, v{BIAS}
v_mov_b32 v{BIAS+3}, v{BIAS}
v_mov_b32 v53, 0x3f80
v_mov_b32 v54, 0x3f800000
''')
    for jj in range(4):
        A(f'''
v_mov_b32 v{SEL+jj}, 0
v_cmp_eq_u32 vcc, {2*jj}, v{n}
v_cndmask_b32 v{SEL+jj}, v{SEL+jj}, v53, vcc
v_cmp_eq_u32 vcc, {2*jj+1}, v{n}
v_cndmask_b32 v{SEL+jj}, v{SEL+jj}, v54, vcc
''')
    A(f'''
s_cmp_lt_u32 s{S_WAVE}, 2
s_cselect_b32 s72, s{S_WQ}, s{S_WK}
s_cselect_b32 s73, s{S_WQ+1}, s{S_WK+1}
s_lshl_b32 s46, s{S_H}, 8
s_add_u32 s72, s72, s46
s_addc_u32 s73, s73, 0
''')
    chunks = []
    for c_ in range(64):
        if c_ < 32:
            kk, hq = c_ // 2, c_ % 2
            def setup(A, c_=c_):
                if c_ == 0: A('s_mov_b32 s48, s72\ns_mov_b32 s49, s73')
                else: A('s_add_u32 s48, s48, 0x20000\ns_addc_u32 s49, s49, 0')
            chunks.append(dict(setup=setup, go=(P_GO0, P_GO1), kind='qk', kk=kk, hq=hq))
        elif c_ < 48:
            kk = c_ - 32
            def setup(A, kk=kk):
                if kk == 0: A(f's_lshl_b32 s46, s{S_H}, 8\ns_add_u32 s48, s{S_WV}, s46\ns_addc_u32 s49, s{S_WV+1}, 0')
                else: A('s_add_u32 s48, s48, 0x40000\ns_addc_u32 s49, s49, 0')
            chunks.append(dict(setup=setup, go=(P_GV0, P_GV1), kind='v', kk=kk))
        else:
            i = c_ - 48; kk, wp = i // 4, i % 4
            def setup(A, kk=kk, wp=wp, i=i):
                if i == 0: A(f's_lshl_b32 s46, s{S_H}, 17\ns_add_u32 s74, s{S_WO}, s46\ns_addc_u32 s75, s{S_WO+1}, 0')
                A(f's_add_u32 s48, s74, {kk*32*1024 + wp*256}\ns_addc_u32 s49, s75, 0')
            chunks.append(dict(setup=setup, go=(P_GOO0, P_GOO1), kind='o', kk=kk, wp=wp))
    TMP = 56
    def tr(A, c_, bo):
        ch = chunks[c_]
        if ch['kind'] == 'qk':
            kk, hq = ch['kk'], ch['hq']
            for te in range(2):
                for ql in range(2):
                    off = bo + ql * 2 * STG_ROW + te * 32
                    if kk < 8:
                        d = WQK + (kk * 2 + te) * 8 + hq * 4 + ql * 2
                    else:
                        d = TMP + te * 4 + ql * 2
                    A(f'ds_read_b64_tr_b16 v[{d}:{d+1}], v{P_TRQ} offset:{off}')
            if kk >= 8:
                A('s_waitcnt lgkmcnt(0)')
                for te in range(2):
                    A(f'ds_write_b128 v{V_IMG}, v[{TMP+te*4}:{TMP+te*4+3}] offset:{((kk-8)*2+te)*2048 + hq*1024}')
        elif ch['kind'] == 'v':
            kk = ch['kk']
            for q in range(4):
                off = bo + (16 * (q >> 1) + 2 * (q & 1)) * STG_ROW
                d = kk * 8 + 2 * q
                A(f'ds_read_b64_tr_b16 a[{d}:{d+1}], v{P_TRV} offset:{off}')
        else:
            kk, wp = ch['kk'], ch['wp']
            L = A.newlabel('L_wo')
            A(f's_cmp_eq_u32 s{S_WAVE}, {wp}\ns_cbranch_scc0 {L}')
            for p in range(2):
                for ab in range(2):
                    for q in range(4):
                        off = bo + (16 * (q >> 1) + 2 * (q & 1)) * STG_ROW + (64 * p + 16 * ab) * 2
                        d = 128 + ((p * 2 + ab) * 4 + kk) * 8 + 2 * q
                        A(f'ds_read_b64_tr_b16 a[{d}:{d+1}], v{P_TRO} offset:{off}')
            A(f'{L}:')
    load_weights(A, chunks, 0, AM, 8, None, None, P_LW, tr)
    stamp(A, 2)
    startbar(A, 'chain', 38, 39)
    stamp(A, 3)
    S_STEP = 54
    A(f'''
s_mov_b32 s{S_STEP}, 0
s_mov_b32 s55, 0
s_mov_b32 s56, 0
s_mov_b32 s57, 0x2000
s_mov_b32 s68, s{S_MEM0}
s_mov_b32 s69, s{S_MEM0+1}
''')
    kv_dma(A, S_STEP)
    for safe in ([0, 1] if cfg.get('safe', 1) else [0]):
        if safe == 0 and cfg.get('safe', 1):
            A(f's_cmp_eq_u32 s{S_SAFE}, 0\ns_cbranch_scc0 L_step1')
        chain_loop(A, cfg, safe)

def chain_loop(A, cfg, safe):
    SF = ' sc1' if safe else ''
    S_STEP = 54
    sx = str(safe)
    DQ = 52
    DV = 60
    A(f'L_step{sx}:')
    A(f'''
s_mov_b32 s45, 0
L_mp{sx}:
global_load_dwordx4 v[{AM}:{AM+3}], v{V_ML}, s[68:69] sc1
global_load_dwordx4 v[{AM+4}:{AM+7}], v{V_ML}, s[68:69] offset:1024 sc1
s_add_u32 s45, s45, 1
s_waitcnt vmcnt(0)
v_max3_u32 v{T}, v{AM}, v{AM+1}, v{AM+2}
v_max3_u32 v{T+1}, v{AM+3}, v{AM+4}, v{AM+5}
v_max3_u32 v{T}, v{T}, v{AM+6}, v{AM+7}
v_max_u32 v{T}, v{T}, v{T+1}
v_cmp_eq_u32 vcc, -1, v{T}
s_cbranch_vccz L_mok{sx}
s_cmp_lt_u32 s45, 200000
s_cbranch_scc1 L_mp{sx}
L_mok{sx}:
ds_write_b128 v{V_MW}, v[{AM}:{AM+3}]
ds_write_b128 v{V_MW}, v[{AM+4}:{AM+7}] offset:1056
s_waitcnt lgkmcnt(0)
s_barrier
''')
    A(f'''
s_cmp_eq_u32 s{S_WAVE}, 1
s_cbranch_scc0 L_nofl{sx}
s_lshl_b32 s46, s{S_H}, 7
s_add_u32 s46, s46, {F_CH}
v_mov_b32 v{T}, s46
v_mov_b32 v{T+1}, s{S_STEP}
v_cmp_eq_u32 vcc, 0, v0
s_and_saveexec_b64 s[36:37], vcc
global_store_dword v{T}, v{T+1}, {SP(S_WS)} sc1
s_mov_b64 exec, s[36:37]
L_nofl{sx}:
''')
    stamp(A, 16, sidx=S_STEP)
    for i in range(12): A(f'v_mov_b32 v{DQ+i}, 0')
    fifo = []
    def ds(instr, tag):
        A(instr); fifo.append(tag)
    def wait(tag):
        if tag not in fifo: return
        k = len(fifo) - 1 - max(i for i, t in enumerate(fifo) if t == tag)
        A(f's_waitcnt lgkmcnt({min(k, 15)})')
        del fifo[:len(fifo) - min(k, 15)]
    def rdA(kk): ds(f'ds_read_b128 v[{AM+4*kk}:{AM+4*kk+3}], v{V_MA} offset:{kk*64}', ('A', kk))
    def rdB(i):
        p = POOL - 0 + (i % NP) * 8
        ds(f'ds_read_b128 v[{p}:{p+3}], v{V_IMG} offset:{i*2048}', ('Bx', i))
        ds(f'ds_read_b128 v[{p+4}:{p+7}], v{V_IMG} offset:{i*2048+1024}', ('B', i))
    NP = 1
    for kk in range(12): rdA(kk)
    def bufB(kk, te):
        i = (kk - 8) * 2 + te
        slots = [40, AM, AM + 8, AM + 16, AM + 24]
        return slots[i % 5]
    def rdB2(kk, te):
        p = bufB(kk, te); i = (kk - 8) * 2 + te
        ds(f'ds_read_b128 v[{p}:{p+3}], v{V_IMG} offset:{i*2048}', ('Bx', i))
        ds(f'ds_read_b128 v[{p+4}:{p+7}], v{V_IMG} offset:{i*2048+1024}', ('B', i))
    nextB = 0
    def issueB(upto_free):
        pass
    rdB2(8, 0)
    for kk in range(16):
        if kk == 0:
            pass
        if kk + 12 < 16 and kk < 4: rdA(kk + 12)
        wait(('A', kk))
        a = f'v[{AM+4*kk}:{AM+4*kk+3}]'
        for te in range(2):
            if kk < 8:
                b = WQK + (kk * 2 + te) * 8
            else:
                i = (kk - 8) * 2 + te
                wait(('B', i))
                b = bufB(kk, te)
            A(f'v_smfmac_f32_16x16x64_bf16 v[{DQ+4*te}:{DQ+4*te+3}], {a}, v[{b}:{b+7}], v{V_IDX}')
        A(f'v_smfmac_f32_16x16x64_bf16 v[{DV}:{DV+3}], {a}, a[{kk*8}:{kk*8+7}], v{V_IDX}')
        if kk == 1: rdB2(8, 1)
        if kk == 3: rdB2(9, 0)
        if kk == 5: rdB2(9, 1)
        if kk == 7: rdB2(10, 0)
        if kk >= 8:
            for te in range(2):
                i = (kk - 8) * 2 + te + 5
                if i < 16: rdB2(8 + i // 2, i % 2)
    X = AM; KA = AM + 16; VA = AM + 48; KMT = AM + 56; TT = 40
    DVB = 36
    A(f'''
v_cvt_pk_bf16_f32 v{DQ}, v{DQ}, v{DQ+1}
v_cvt_pk_bf16_f32 v{DQ+1}, v{DQ+2}, v{DQ+3}
v_cvt_pk_bf16_f32 v{DQ+4}, v{DQ+4}, v{DQ+5}
v_cvt_pk_bf16_f32 v{DQ+5}, v{DQ+6}, v{DQ+7}
ds_write_b64 v{V_QW}, v[{DQ}:{DQ+1}]
ds_write_b64 v{V_QW}, v[{DQ+4}:{DQ+5}] offset:{16*RS}
v_cvt_pk_bf16_f32 v{DVB}, v{DV}, v{DV+1}
v_cvt_pk_bf16_f32 v{DVB+1}, v{DV+2}, v{DV+3}
''')
    for kp in range(4):
        for tt in range(2):
            d = KA + (kp * 2 + tt) * 4
            A(f'ds_read_b128 v[{d}:{d+3}], v{V_KR} offset:{(kp*2+tt)*1024}')
    for te in range(2):
        A(f'ds_read_b128 v[{VA+4*te}:{VA+4*te+3}], v{V_VR} offset:{te*1024}')
    A(f'''
s_lshl_b32 s50, s{S_STEP}, 16
s_add_u32 s50, s50, {KM}
s_add_u32 s50, s{S_WS}, s50
s_addc_u32 s51, s{S_WS+1}, 0
s_add_u32 s52, s50, {VM-KM}
s_addc_u32 s53, s51, 0
global_store_dwordx2 v{V_VMS}, v[{DVB}:{DVB+1}], s[52:53] sc1
s_waitcnt lgkmcnt(0)
s_barrier
''')
    for kp in range(4):
        for te in range(2):
            d = X + kp * 4 + te * 2
            A(f'ds_read_b64_tr_b16 v[{d}:{d+1}], v{V_QR} offset:{(32*kp+16*te)*RS}')
    for te in range(2):
        A(f'ds_read_b64_tr_b16 v[{KMT+2*te}:{KMT+2*te+1}], v{V_KMR} offset:{16*te*RS}')
    A('s_waitcnt lgkmcnt(0)')
    A(f'''
s_mov_b64 exec, s[62:63]
global_store_dwordx4 v{V_KMS}, v[{KMT}:{KMT+3}], s[50:51] sc1
s_mov_b64 exec, -1
s_cmp_eq_u32 s{S_STEP}, 63
s_cbranch_scc1 L_chain_end
''')
    for kp in range(4):
        x = f'v[{X+4*kp}:{X+4*kp+3}]'
        c0 = f'v[{BIAS}:{BIAS+3}]' if kp == 0 else f'v[{TT}:{TT+3}]'
        A(f'v_mfma_f32_16x16x32_bf16 v[{TT}:{TT+3}], {x}, {x}, {c0}')
        for tt in range(2):
            d = TT + 4 + 4 * tt
            ka = KA + (kp * 2 + tt) * 4
            c = '0' if kp == 0 else f'v[{d}:{d+3}]'
            A(f'v_mfma_f32_16x16x32_bf16 v[{d}:{d+3}], v[{ka}:{ka+3}], {x}, {c}')
    M = 52; M2 = 53; MC = 54; PX = 56; PM = 60; BA = 62
    cexp = 128 ** -0.5 * 1.4426950408889634
    import struct
    cbits = struct.unpack('<I', struct.pack('<f', cexp))[0]
    t = [TT + i for i in range(12)]
    A(f'''
s_mov_b32 s46, {hex(cbits)}
v_max3_f32 v{M}, v{t[4]}, v{t[5]}, v{t[6]}
v_max3_f32 v{M}, v{M}, v{t[7]}, v{t[8]}
v_max3_f32 v{M}, v{M}, v{t[9]}, v{t[10]}
v_max3_f32 v{M}, v{M}, v{t[11]}, v{t[0]}
v_max3_f32 v{M}, v{M}, v{t[1]}, v{t[2]}
v_max_f32 v{M}, v{M}, v{t[3]}
v_mov_b32 v{M2}, v{M}
v_permlane32_swap_b32 v{M}, v{M2}
v_max_f32 v{M}, v{M}, v{M2}
v_mov_b32 v{M2}, v{M}
v_permlane16_swap_b32 v{M}, v{M2}
v_max_f32 v{M}, v{M}, v{M2}
v_mul_f32 v{MC}, s46, v{M}
v_sub_f32 v{MC}, 0, v{MC}
''')
    for i in range(12): A(f'v_fma_f32 v{t[i]}, v{t[i]}, s46, v{MC}')
    for i in range(12): A(f'v_exp_f32 v{t[i]}, v{t[i]}')
    A(f'''
v_cvt_pk_bf16_f32 v{PX}, v{t[4]}, v{t[5]}
v_cvt_pk_bf16_f32 v{PX+1}, v{t[6]}, v{t[7]}
v_cvt_pk_bf16_f32 v{PX+2}, v{t[8]}, v{t[9]}
v_cvt_pk_bf16_f32 v{PX+3}, v{t[10]}, v{t[11]}
v_cvt_pk_bf16_f32 v{PM}, v{t[0]}, v{t[1]}
v_cvt_pk_bf16_f32 v{PM+1}, v{t[2]}, v{t[3]}
v_mov_b32 v{t[0]}, v{PM}
v_mov_b32 v{t[1]}, v{PM+1}
v_mov_b32 v{BA}, 0
v_mov_b32 v{BA+1}, 0
v_permlane32_swap_b32 v{t[0]}, v{BA}
v_permlane32_swap_b32 v{t[1]}, v{BA+1}
''')
    O = X
    LL = X + 8
    for te in range(2):
        A(f'v_mfma_f32_16x16x32_bf16 v[{O+4*te}:{O+4*te+3}], v[{VA+4*te}:{VA+4*te+3}], v[{PX}:{PX+3}], 0')
    A(f'v_mfma_f32_16x16x32_bf16 v[{LL}:{LL+3}], v[{ONES}:{ONES+3}], v[{PX}:{PX+3}], 0')
    A(f'v_mfma_f32_16x16x16_bf16 v[{O}:{O+3}], v[{DVB}:{DVB+1}], v[{BA}:{BA+1}], v[{O}:{O+3}]')
    A(f'v_mfma_f32_16x16x16_bf16 v[{O+4}:{O+7}], v[{DVB}:{DVB+1}], v[{PM}:{PM+1}], v[{O+4}:{O+7}]')
    A(f'v_mfma_f32_16x16x16_bf16 v[{LL}:{LL+3}], v[{ONES}:{ONES+1}], v[{PM}:{PM+1}], v[{LL}:{LL+3}]')
    A(f'v_rcp_f32 v{LL}, v{LL}')
    for i in range(8): A(f'v_mul_f32 v{O+i}, v{O+i}, v{LL}')
    A(f'''
v_cvt_pk_bf16_f32 v{O}, v{O}, v{O+1}
v_cvt_pk_bf16_f32 v{O+1}, v{O+2}, v{O+3}
v_cvt_pk_bf16_f32 v{O+4}, v{O+4}, v{O+5}
v_cvt_pk_bf16_f32 v{O+5}, v{O+6}, v{O+7}
s_mov_b64 exec, s[60:61]
ds_write_b64 v{V_OW}, v[{O}:{O+1}]
ds_write_b64 v{V_OW}, v[{O+4}:{O+5}] offset:32
s_mov_b64 exec, -1
s_waitcnt lgkmcnt(0)
s_barrier
''')
    OA = AM + 16
    DO = AM + 32
    for kk in range(4):
        A(f'ds_read_b128 v[{OA+4*kk}:{OA+4*kk+3}], v{V_OR} offset:{kk*64}')
    for i in range(16): A(f'v_mov_b32 v{DO+i}, 0')
    for kk in range(4):
        A(f's_waitcnt lgkmcnt({3-kk})')
        for d in range(4):
            b = 128 + (d * 4 + kk) * 8
            A(f'v_smfmac_f32_16x16x64_bf16 v[{DO+4*d}:{DO+4*d+3}], v[{OA+4*kk}:{OA+4*kk+3}], a[{b}:{b+7}], v{V_IDX}')
    for p in range(2):
        for ab in range(2):
            d = DO + (p * 2 + ab) * 4
            q = OA + p * 4 + ab * 2
            A(f'v_cvt_pk_bf16_f32 v{q}, v{d}, v{d+1}')
            A(f'v_cvt_pk_bf16_f32 v{q+1}, v{d+2}, v{d+3}')
    A(f'''
s_add_u32 s64, s{S_WS}, s55
s_addc_u32 s65, s{S_WS+1}, 0
s_add_u32 s64, s64, {HOPA}
s_addc_u32 s65, s65, 0
s_add_u32 s66, s64, 0x8000
s_addc_u32 s67, s65, 0
global_store_dwordx4 v{V_HA}, v[{OA}:{OA+3}], s[64:65]{SF}
global_store_dwordx4 v{V_HA}, v[{OA+4}:{OA+7}], s[66:67]{SF}
''')
    A(f's_add_u32 s58, s{S_STEP}, 1')
    kv_dma(A, 58)
    RB = AM
    ACC = AM + 32
    A(f'''
s_cmp_eq_u32 s{S_WAVE}, 0
s_cbranch_scc0 L_nored{sx}
s_add_u32 s66, s64, 4096
s_addc_u32 s67, s65, 0
s_mov_b32 s45, 0
L_ra{sx}:
''')
    for i in range(8):
        base = 's[64:65]' if i < 4 else 's[66:67]'
        A(f'global_load_dwordx4 v[{RB+4*i}:{RB+4*i+3}], v{V_RL}, {base} offset:{(i&3)*1024} sc1')
    A('s_add_u32 s45, s45, 1')
    for i in range(8):
        A(f's_waitcnt vmcnt({7-i})')
        c = '0' if i == 0 else f'v[{ACC}:{ACC+3}]'
        A(f'v_mfma_f32_16x16x32_bf16 v[{ACC}:{ACC+3}], v[{RB+4*i}:{RB+4*i+3}], v[{SEL}:{SEL+3}], {c}')
    A(f'''
v_cmp_u_f32 vcc, v{ACC}, v{ACC+1}
v_cmp_u_f32 s[46:47], v{ACC+2}, v{ACC+3}
s_or_b64 vcc, vcc, s[46:47]
s_cbranch_vccz L_rok{sx}
s_cmp_lt_u32 s45, 200000
s_cbranch_scc1 L_ra{sx}
L_rok{sx}:
v_cvt_pk_bf16_f32 v{ACC}, v{ACC}, v{ACC+1}
v_cvt_pk_bf16_f32 v{ACC+1}, v{ACC+2}, v{ACC+3}
s_add_u32 s70, s{S_WS}, s57
s_addc_u32 s71, s{S_WS+1}, 0
s_add_u32 s70, s70, {HOPB}
s_addc_u32 s71, s71, 0
s_mov_b64 exec, s[60:61]
global_store_dwordx2 v{V_HB}, v[{ACC}:{ACC+1}], s[70:71]{SF}
s_add_u32 s70, s{S_WS}, s56
s_addc_u32 s71, s{S_WS+1}, 0
s_add_u32 s70, s70, {HOPB}
s_addc_u32 s71, s71, 0
global_store_dwordx2 v{V_HB}, v[{POIS}:{POIS+1}], s[70:71]{SF}
s_mov_b64 exec, -1
''')
    for i in range(8):
        base = 's[64:65]' if i < 4 else 's[66:67]'
        A(f'global_store_dwordx4 v{V_RL}, v[{POIS}:{POIS+3}], {base} offset:{(i&3)*1024}{SF}')
    A(f'''
L_nored{sx}:
s_xor_b32 s55, s55, 0x40000
s_mov_b32 s56, s57
s_add_u32 s57, s57, 0x2000
s_cmp_eq_u32 s57, 0x6000
s_cselect_b32 s57, 0, s57
s_add_u32 s68, s{S_WS}, s56
s_addc_u32 s69, s{S_WS+1}, 0
s_add_u32 s68, s68, {HOPB}
s_addc_u32 s69, s69, 0
s_add_u32 s{S_STEP}, s{S_STEP}, 1
s_branch L_step{sx}
''')
    if safe == (1 if cfg.get('safe', 1) else 0):
        A(f'''
L_chain_end:
s_waitcnt vmcnt(0)
s_barrier
s_cmp_eq_u32 s{S_WAVE}, 1
s_cbranch_scc0 L_chain_fin
s_lshl_b32 s46, s{S_H}, 7
s_add_u32 s46, s46, {F_CH}
v_mov_b32 v{T}, s46
v_mov_b32 v{T+1}, 64
v_cmp_eq_u32 vcc, 0, v0
s_and_saveexec_b64 s[36:37], vcc
global_store_dword v{T}, v{T+1}, {SP(S_WS)} sc1
s_mov_b64 exec, s[36:37]
s_waitcnt vmcnt(0)
L_chain_fin:
''')
        stamp(A, 90)
        A('s_endpgm')
```

```python
from gen import *
import gen as G
from chain import poll_ge
import struct
def fbits(x): return hex(struct.unpack('<I', struct.pack('<f', x))[0])

XB0 = 0; XBS = 33792
W1I = 67584
QX = 133120
OX = QX + 8192
HX = OX + 8192
GB = HX + 3072
assert GB + 256 <= 163840 - 64

V_XG, V_XR, V_W1R, V_QXW, V_LN16, V_HW, V_HW2, V_HR2, V_GBR, V_KMR, V_VAR, V_VMR, V_OXW, V_PS, V_RL, V_OS, V_GBW = range(1, 18)
V_QXR = 18; V_DMA = 19
V_HR = 140; V_OXR = 141; V_GBQ = 139
BT0 = 20; BT1 = 24; BT2 = 28
ONES = 32
SELA = 36
WK0 = 40
ACC = 144
W2R = 208

def out_role(A, cfg):
    G.STV[:] = [142, 143]
    A('L_out_pro:')
    g, n, r, c = 40, 41, 42, 43
    A(f'''
s_sub_u32 s34, s{S_G}, 128
s_lshr_b32 s{S_H}, s34, 2
s_and_b32 s{S_RHO}, s34, 3
v_lshrrev_b32 v{g}, 4, v0
v_and_b32 v{n}, 15, v0
v_lshrrev_b32 v{r}, 2, v{n}
v_and_b32 v{c}, 3, v{n}
v_lshlrev_b32 v{V_LN16}, 4, v0          ; lane*16
s_lshl_b32 s34, s{S_WAVE}, 13
v_add_u32 v{V_XG}, s34, v{V_LN16}
v_mul_u32_u24 v{V_XR}, 1056, v{n}
v_lshlrev_b32 v44, 4, v{g}
v_add_u32 v{V_XR}, v{V_XR}, v44         ; x frag: n*1056 + g*16
s_lshl_b32 s34, s{S_WAVE}, 14
s_add_u32 s34, s34, {W1I}
v_add_u32 v{V_W1R}, s34, v{V_LN16}
s_lshl_b32 s34, s{S_WAVE}, 11
s_add_u32 s35, s34, {QX}
v_add_u32 v{V_QXW}, s35, v{V_LN16}
v_add_u32 v{V_DMA}, s34, v{V_LN16}
v_lshlrev_b32 v45, 3, v0
s_lshl_b32 s34, s{S_WAVE}, 3
s_add_u32 s34, s34, {HX}
v_add_u32 v{V_HW}, s34, v{V_LN16}
v_add_u32 v{V_HW2}, {HX+2048}, v45
v_add_u32 v{V_HR2}, {HX+2048}, v45
v_add_u32 v{V_HR}, {HX}, v{V_LN16}
v_add_u32 v{V_OXR}, {OX}, v{V_LN16}
v_lshlrev_b32 v46, 2, v{n}
v_add_u32 v{V_GBR}, {GB}, v46
v_add_u32 v{V_GBW}, {GB}, v46
s_and_b32 s34, s{S_WAVE}, 1
s_lshl_b32 s34, s34, 6
v_add_u32 v{V_GBQ}, s34, v{V_GBR}
s_and_b32 s34, s{S_WAVE}, 1
s_lshl_b32 s34, s34, 10
s_add_u32 s34, s34, {QX}
v_add_u32 v{V_QXR}, s34, v{V_LN16}
v_lshlrev_b32 v46, 7, v{g}
v_and_b32 v47, 7, v{n}
v_lshlrev_b32 v47, 4, v47
v_add_u32 v{V_KMR}, v46, v47
v_add_u32 v{V_KMR}, 16384, v{V_KMR}
s_lshr_b32 s34, s{S_WAVE}, 1
s_lshl_b32 s35, s34, 12
s_add_u32 s35, s35, 8192
v_add_u32 v{V_VAR}, s35, v{V_LN16}
s_lshl_b32 s35, s34, 10
s_add_u32 s35, s35, 18432
v_add_u32 v{V_VMR}, s35, v45
s_and_b32 s35, s{S_WAVE}, 1
s_lshl_b32 s35, s35, 12
s_lshl_b32 s34, s34, 11
s_add_u32 s34, s34, s35
s_add_u32 s34, s34, {OX}
v_add_u32 v{V_OXW}, s34, v{V_LN16}
s_lshl_b32 s34, s{S_WAVE}, 17
s_lshl_b32 s35, s{S_H}, 10
s_add_u32 s34, s34, s35
v_add_u32 v{V_PS}, s34, v{V_LN16}
s_lshl_b32 s34, s{S_H}, 15
s_lshl_b32 s35, s{S_WAVE}, 8
s_add_u32 s34, s34, s35
v_lshlrev_b32 v46, 10, v{g}
v_lshlrev_b32 v47, 4, v{n}
v_add_u32 v46, v46, v47
v_add_u32 v{V_RL}, s34, v46
s_lshr_b32 s34, s{S_H}, 4
s_lshl_b32 s34, s34, 14               ; 16 tokens * 1024
s_and_b32 s35, s{S_H}, 15
s_lshl_b32 s35, s35, 6
s_add_u32 s34, s34, s35
s_lshl_b32 s35, s{S_WAVE}, 4
s_add_u32 s34, s34, s35
v_lshlrev_b32 v46, 10, v{n}
v_lshlrev_b32 v47, 3, v{g}
v_add_u32 v46, v46, v47
v_add_u32 v{V_OS}, s34, v46
v_cmp_gt_u32 s[60:61], 32, v0         ; lanes g<2
; constants
v_mov_b32 v{ONES}, 0x3f803f80
v_mov_b32 v{ONES+1}, 0x3f803f80
v_mov_b32 v{ONES+2}, 0x3f803f80
v_mov_b32 v{ONES+3}, 0x3f803f80
v_mov_b32 v48, 0xf149f2ca             ; -1e30
v_cmp_le_u32 vcc, 2, v{g}
v_cndmask_b32 v{BT0}, 0, v48, vcc
v_mov_b32 v{BT0+1}, v{BT0}
v_mov_b32 v{BT0+2}, v{BT0}
v_mov_b32 v{BT0+3}, v{BT0}
s_and_b32 s34, s{S_WAVE}, 1
s_lshl_b32 s34, s34, 4
v_add_u32 v49, s34, v{n}              ; q
v_lshlrev_b32 v50, 2, v{g}            ; 4g
''')
    for t_, B in ((0, BT1), (1, BT2)):
        for rr in range(4):
            A(f'''
v_add_u32 v51, {16*t_+rr}, v50
v_cmp_gt_u32 vcc, v51, v49
v_cndmask_b32 v{B+rr}, 0, v48, vcc
''')
    A('v_mov_b32 v51, 0x3f80\nv_mov_b32 v52, 0x3f800000')
    for jj in range(4):
        A(f'''
v_mov_b32 v{SELA+jj}, 0
v_cmp_eq_u32 vcc, {2*jj}, v{n}
v_cndmask_b32 v{SELA+jj}, v{SELA+jj}, v51, vcc
v_cmp_eq_u32 vcc, {2*jj+1}, v{n}
v_cndmask_b32 v{SELA+jj}, v{SELA+jj}, v52, vcc
''')
    def xdma(A, s_seg, s_buf):
        A(f'''
s_lshl_b32 s50, s{s_seg}, 15
s_add_u32 s50, s{S_X}, s50
s_addc_u32 s51, s{S_X+1}, 0
s_mul_i32 s52, s{S_WAVE}, {8*1056}
s_add_u32 s52, s52, s{s_buf}
''')
        for rr in range(8):
            if rr == 4: A('s_add_u32 s50, s50, 4096\ns_addc_u32 s51, s51, 0')
            A(f's_add_u32 m0, s52, {rr*1056 - 1024*(rr&3)}')
            A(f'global_load_lds_dwordx4 v{V_XG}, s[50:51] offset:{1024*(rr&3)}')
    A(f's_mov_b32 s54, s{S_RHO}\ns_mov_b32 s55, {XB0}')
    xdma(A, 54, 55)
    P_GO0, P_GO1, P_LW, P_TR, P_TRO, P_PW, P_PG = 44, 45, 46, 47, 48, 49, 50
    STG = XB0 + XBS
    A(f'''
s_lshl_b32 s34, s{S_WAVE}, 3
v_add_u32 v51, s34, v{g}
v_lshlrev_b32 v{P_GO0}, 13, v51
v_lshlrev_b32 v52, 4, v{n}
v_add_u32 v{P_GO0}, v{P_GO0}, v52
v_add_u32 v{P_GO1}, 0x8000, v{P_GO0}
v_mul_u32_u24 v{P_LW}, {STG_ROW}, v51
v_add_u32 v{P_LW}, v{P_LW}, v52
v_add_u32 v{P_LW}, {STG}, v{P_LW}
v_lshlrev_b32 v53, 3, v{g}
v_add_u32 v53, v53, v{r}
v_mul_u32_u24 v{P_TR}, {STG_ROW}, v53
v_lshlrev_b32 v54, 3, v{c}
s_lshl_b32 s34, s{S_WAVE}, 6
v_add_u32 v54, s34, v54
v_add_u32 v{P_TR}, v{P_TR}, v54
v_add_u32 v{P_TR}, {STG}, v{P_TR}
s_mul_i32 s34, s{S_WAVE}, 13824
s_add_u32 s34, s34, {W1I}
v_mul_u32_u24 v{P_PW}, {STG_ROW}, v{g}
v_add_u32 v{P_PW}, v{P_PW}, v52
v_add_u32 v{P_PW}, s34, v{P_PW}
v_lshlrev_b32 v53, 2, v{g}
v_add_u32 v53, v53, v{r}
v_mul_u32_u24 v{P_TRO}, {STG_ROW}, v53
v_lshlrev_b32 v54, 4, v{c}
v_add_u32 v{P_TRO}, v{P_TRO}, v54
v_add_u32 v{P_TRO}, s34, v{P_TRO}
v_lshlrev_b32 v{P_PG}, 10, v{g}
v_add_u32 v{P_PG}, v{P_PG}, v52
s_lshl_b32 s34, s{S_WAVE}, 8
v_add_u32 v{P_PG}, s34, v{P_PG}
''')
    chunks = []
    for kk in range(16):
        def setup(A, kk=kk):
            if kk == 0: A(f's_lshl_b32 s46, s{S_H}, 8\ns_add_u32 s48, s{S_WQ}, s46\ns_addc_u32 s49, s{S_WQ+1}, 0')
            else: A('s_add_u32 s48, s48, 0x40000\ns_addc_u32 s49, s49, 0')
        chunks.append(dict(setup=setup))
    def tr(A, kk, bo):
        for te in range(2):
            for q in range(2):
                d = (te * 16 + kk) * 4 + 2 * q
                A(f'ds_read_b64_tr_b16 a[{d}:{d+1}], v{P_TR} offset:{bo + q*4*STG_ROW + te*32}')
    load_weights(A, chunks, 0, 64, 8, P_GO0, P_GO1, P_LW, tr)
    LAND = 64
    A(f's_lshl_b32 s46, s{S_H}, 17\ns_add_u32 s48, s{S_WO}, s46\ns_addc_u32 s49, s{S_WO+1}, 0')
    for half in range(2):
        for i in range(16):
            A(f'global_load_dwordx4 v[{LAND+4*i}:{LAND+4*i+3}], v{P_PG}, s[48:49]')
            A('s_add_u32 s48, s48, 4096\ns_addc_u32 s49, s49, 0')
        for kc in range(2):
            kap = half * 2 + kc
            A(f's_waitcnt vmcnt({8 if kc == 0 else 0})')
            for i in range(8):
                rr = LAND + 4 * (kc * 8 + i)
                A(f'ds_write_b128 v{P_PW}, v[{rr}:{rr+3}] offset:{i*4*STG_ROW}')
            A('s_waitcnt lgkmcnt(0)')
            for cp in range(4):
                for u in range(2):
                    for q in range(2):
                        d = 128 + ((cp * 2 + u) * 4 + kap) * 4 + 2 * q
                        A(f'ds_read_b64_tr_b16 a[{d}:{d+1}], v{P_TRO} offset:{q*16*STG_ROW + cp*64 + u*8}')
            A('s_waitcnt lgkmcnt(0)')
    A(f'''
s_mul_i32 s46, s{S_H}, 3
s_lshl_b32 s47, s{S_H}, 1
s_add_u32 s47, s47, 22
s_cmp_lt_u32 s{S_H}, 22
s_cselect_b32 s76, s46, s47
s_cselect_b32 s77, 1, 0
s_lshl_b32 s46, s76, 14
s_add_u32 s48, s{S_W2}, s46
s_addc_u32 s49, s{S_W2+1}, 0
''')
    for i in range(8):
        A(f'global_load_dwordx4 v[{LAND+4*i}:{LAND+4*i+3}], v{P_PG}, s[48:49]')
        A('s_add_u32 s48, s48, 4096\ns_addc_u32 s49, s49, 0')
    for i in range(8, 12):
        for j in range(4): A(f'v_mov_b32 v{LAND+4*i+j}, 0')
    A('s_cmp_eq_u32 s77, 0\ns_cbranch_scc1 L_o_no3')
    for i in range(8, 12):
        A(f'global_load_dwordx4 v[{LAND+4*i}:{LAND+4*i+3}], v{P_PG}, s[48:49]')
        A('s_add_u32 s48, s48, 4096\ns_addc_u32 s49, s49, 0')
    A('L_o_no3:')
    A('s_waitcnt vmcnt(0)')
    for i in range(12):
        A(f'ds_write_b128 v{P_PW}, v[{LAND+4*i}:{LAND+4*i+3}] offset:{i*4*STG_ROW}')
    A('s_waitcnt lgkmcnt(0)')
    for cp in range(4):
        for u in range(2):
            for q in range(3):
                d = W2R + (cp * 2 + u) * 6 + 2 * q
                A(f'ds_read_b64_tr_b16 v[{d}:{d+1}], v{P_TRO} offset:{q*16*STG_ROW + cp*64 + u*8}')
    A('s_waitcnt lgkmcnt(0)\ns_barrier')
    A(f'''
s_cmp_eq_u32 s{S_WAVE}, 3
s_cbranch_scc1 L_o_gate
s_cmp_eq_u32 s{S_WAVE}, 2
s_cselect_b32 s46, s77, 1
s_cmp_eq_u32 s46, 0
s_cbranch_scc1 L_o_zero
v_lshrrev_b32 v51, 1, v0
v_mul_u32_u24 v{P_PG}, 2752, v51
v_and_b32 v52, 1, v0
v_lshlrev_b32 v52, 4, v52
v_add_u32 v{P_PG}, v{P_PG}, v52
s_add_u32 s46, s76, s{S_WAVE}
s_lshl_b32 s46, s46, 5
s_add_u32 s48, s{S_W1}, s46
s_addc_u32 s49, s{S_W1+1}, 0
s_mul_i32 s34, s{S_WAVE}, 6144
s_add_u32 s34, s34, {STG}
v_mul_u32_u24 v{P_PW}, 48, v51
v_add_u32 v{P_PW}, v{P_PW}, v52
v_add_u32 v{P_PW}, s34, v{P_PW}
v_lshlrev_b32 v53, 3, v{g}
v_add_u32 v53, v53, v{r}
v_mul_u32_u24 v{P_TRO}, 48, v53
v_lshlrev_b32 v54, 3, v{c}
v_add_u32 v{P_TRO}, v{P_TRO}, v54
v_add_u32 v{P_TRO}, s34, v{P_TRO}
''')
    for kk in range(16):
        A(f'global_load_dwordx4 v[{LAND+4*kk}:{LAND+4*kk+3}], v{P_PG}, s[48:49]')
        A(f's_add_u32 s48, s48, {32*2752}\ns_addc_u32 s49, s49, 0')
    TMP = 144
    for grp in range(4):
        A(f's_waitcnt vmcnt({12-4*grp})')
        for j in range(4):
            kk = grp * 4 + j
            A(f'ds_write_b128 v{P_PW}, v[{LAND+4*kk}:{LAND+4*kk+3}] offset:{j*1536}')
        A('s_waitcnt lgkmcnt(0)')
        for j in range(4):
            for q in range(2):
                d = TMP + j * 4 + 2 * q
                A(f'ds_read_b64_tr_b16 v[{d}:{d+1}], v{P_TRO} offset:{j*1536 + q*4*48}')
        A('s_waitcnt lgkmcnt(0)')
        for j in range(4):
            kk = grp * 4 + j
            A(f'ds_write_b128 v{V_W1R}, v[{TMP+4*j}:{TMP+4*j+3}] offset:{kk*1024}')
        A('s_waitcnt lgkmcnt(0)')
    A('s_branch L_o_w1done')
    A('L_o_zero:')
    for j in range(4): A(f'v_mov_b32 v{TMP+j}, 0')
    for kk in range(16): A(f'ds_write_b128 v{V_W1R}, v[{TMP}:{TMP+3}] offset:{kk*1024}')
    A('s_branch L_o_w1done')
    A('L_o_gate:')
    A(f'v_lshlrev_b32 v{P_PG}, 4, v{g}')
    for kk in range(16):
        A(f'global_load_dwordx4 v[{LAND+4*kk}:{LAND+4*kk+3}], v{P_PG}, {SP(S_GW)} offset:{kk*64}')
    A('s_waitcnt vmcnt(0)')
    for kk in range(16):
        A(f'ds_write_b128 v{V_W1R}, v[{LAND+4*kk}:{LAND+4*kk+3}] offset:{kk*1024}')
    A('L_o_w1done:')
    A('s_waitcnt vmcnt(0) lgkmcnt(0)\ns_barrier')
    stamp(A, 2)
    startbar(A, 'out', 142, 143)
    stamp(A, 3)
    XF = 40
    WF = 72
    QA = 88
    HA = 104
    T = 112
    A('s_mov_b32 s56, 0')
    A('L_o_loop:')
    A(f's_add_u32 s57, s54, 4')
    A(f's_xor_b32 s58, s55, {XB0 ^ (XB0 + XBS)}')
    A('s_cmp_lt_u32 s57, 64')
    A('s_cbranch_scc0 L_o_nopf')
    xdma(A, 57, 58)
    A('L_o_nopf:')
    A(f'v_add_u32 v{T}, s55, v{V_XR}')
    NS = 4
    def rd(kk):
        sl = kk % NS
        for tt in range(2):
            rr = XF + (sl * 2 + tt) * 4
            A(f'ds_read_b128 v[{rr}:{rr+3}], v{T} offset:{tt*16*1056 + kk*64}')
        A(f'ds_read_b128 v[{WF+4*sl}:{WF+4*sl+3}], v{V_W1R} offset:{kk*1024}')
    for kk in range(NS - 1): rd(kk)
    for kk in range(16):
        if kk + NS - 1 < 16: rd(kk + NS - 1)
        rem = min(16, kk + NS) - (kk + 1)
        A(f's_waitcnt lgkmcnt({3*rem})')
        sl = kk % NS
        for te in range(2):
            for tt in range(2):
                xf = XF + (sl * 2 + tt) * 4
                d = QA + (te * 2 + tt) * 4
                wq = (te * 16 + kk) * 4
                cc = '0' if kk == 0 else f'v[{d}:{d+3}]'
                A(f'v_mfma_f32_16x16x32_bf16 v[{d}:{d+3}], a[{wq}:{wq+3}], v[{xf}:{xf+3}], {cc}')
        for tt in range(2):
            xf = XF + (sl * 2 + tt) * 4
            d = HA + tt * 4
            cc = '0' if kk == 0 else f'v[{d}:{d+3}]'
            A(f'v_mfma_f32_16x16x32_bf16 v[{d}:{d+3}], v[{WF+4*sl}:{WF+4*sl+3}], v[{xf}:{xf+3}], {cc}')
    for tt in range(2):
        p = XF + tt * 4
        for te in range(2):
            d = QA + (te * 2 + tt) * 4
            A(f'v_cvt_pk_bf16_f32 v{p+2*te}, v{d}, v{d+1}')
            A(f'v_cvt_pk_bf16_f32 v{p+2*te+1}, v{d+2}, v{d+3}')
        A(f'ds_write_b128 v{V_QXW}, v[{p}:{p+3}] offset:{tt*1024}')
    A(f's_mov_b32 s46, {fbits(-1.4426950408889634)}')
    for i in range(8): A(f'v_mul_f32 v{WF+i}, s46, v{HA+i}')
    for i in range(8): A(f'v_exp_f32 v{WF+i}, v{WF+i}')
    for i in range(8): A(f'v_add_f32 v{WF+i}, 1.0, v{WF+i}')
    for i in range(8): A(f'v_rcp_f32 v{WF+i}, v{WF+i}')
    A(f's_cmp_eq_u32 s{S_WAVE}, 3\ns_cbranch_scc1 L_o_g')
    for i in range(8): A(f'v_mul_f32 v{HA+i}, v{HA+i}, v{WF+i}')
    for tt in range(2):
        A(f'v_cvt_pk_bf16_f32 v{WF+8+2*tt}, v{HA+4*tt}, v{HA+4*tt+1}')
        A(f'v_cvt_pk_bf16_f32 v{WF+8+2*tt+1}, v{HA+4*tt+2}, v{HA+4*tt+3}')
    A(f's_cmp_eq_u32 s{S_WAVE}, 2\ns_cbranch_scc1 L_o_h2')
    for tt in range(2):
        A(f'ds_write_b64 v{V_HW}, v[{WF+8+2*tt}:{WF+8+2*tt+1}] offset:{tt*1024}')
    A('s_branch L_o_hdone')
    A('L_o_h2:')
    for tt in range(2):
        A(f'ds_write_b64 v{V_HW2}, v[{WF+8+2*tt}:{WF+8+2*tt+1}] offset:{tt*512}')
    A('s_branch L_o_hdone')
    A('L_o_g:')
    A(f'''
v_cmp_gt_u32 vcc, 16, v0
s_and_saveexec_b64 s[36:37], vcc
ds_write_b32 v{V_GBW}, v{WF}
ds_write_b32 v{V_GBW}, v{WF+4} offset:64
s_mov_b64 exec, s[36:37]
L_o_hdone:
s_waitcnt lgkmcnt(0)
s_barrier
''')
    A(f'''
s_and_b32 s47, s54, 3
s_mul_i32 s46, s54, 171
s_lshr_b32 s46, s46, 9
s_mul_i32 s47, s46, 3
s_sub_u32 s47, s54, s47
s_add_u32 s46, s46, 1
s_lshl_b32 s47, s47, 2
s_lshl_b32 s50, s{S_H}, 7
s_add_u32 s47, s47, s50
s_add_u32 s47, s47, {F_KV}
''')
    poll_ge(A, 47, 46, vt=T)
    A(f'''
s_lshl_b32 s50, s54, 18
s_lshl_b32 s51, s{S_H}, 13
s_add_u32 s50, s50, s51
s_add_u32 s50, s50, {KX}
s_add_u32 s50, s{S_WS}, s50
s_addc_u32 s51, s{S_WS+1}, 0
s_add_u32 s52, s50, {VX-KX}
s_addc_u32 s53, s51, 0
s_lshl_b32 s46, s{S_WAVE}, 11
s_add_u32 s46, s46, s55
s_mov_b32 m0, s46
s_nop 0
global_load_lds_dwordx4 v{V_DMA}, s[50:51] sc1
global_load_lds_dwordx4 v{V_DMA}, s[50:51] offset:1024 sc1
s_add_u32 m0, s46, 8192
s_nop 0
global_load_lds_dwordx4 v{V_DMA}, s[52:53] sc1
global_load_lds_dwordx4 v{V_DMA}, s[52:53] offset:1024 sc1
''')
    HB = XF; HB2 = XF + 8; GT = XF + 12; GQ = XF + 14
    for tt in range(2):
        A(f'ds_read_b128 v[{HB+4*tt}:{HB+4*tt+3}], v{V_HR} offset:{tt*1024}')
        A(f'ds_read_b64 v[{HB2+2*tt}:{HB2+2*tt+1}], v{V_HR2} offset:{tt*512}')
        A(f'ds_read_b32 v{GT+tt}, v{V_GBR} offset:{tt*64}')
    A(f'ds_read_b32 v{GQ}, v{V_GBQ}')
    A('s_waitcnt lgkmcnt(0)')
    def acc(cp, u, tt): return ACC + ((cp * 2 + u) * 2 + tt) * 4
    for cp in range(4):
        for u in range(2):
            w = W2R + (cp * 2 + u) * 6
            for tt in range(2):
                d = acc(cp, u, tt)
                A(f'v_mfma_f32_16x16x32_bf16 v[{d}:{d+3}], v[{w}:{w+3}], v[{HB+4*tt}:{HB+4*tt+3}], 0')
    for cp in range(4):
        for u in range(2):
            w = W2R + (cp * 2 + u) * 6
            for tt in range(2):
                d = acc(cp, u, tt)
                A(f'v_mfma_f32_16x16x16_bf16 v[{d}:{d+3}], v[{w+4}:{w+5}], v[{HB2+2*tt}:{HB2+2*tt+1}], v[{d}:{d+3}]')
    A(f'v_sub_f32 v{GT}, 1.0, v{GT}')
    A(f'v_sub_f32 v{GT+1}, 1.0, v{GT+1}')
    for cp in range(4):
        for u in range(2):
            for tt in range(2):
                d = acc(cp, u, tt)
                for j in range(4): A(f'v_mul_f32 v{d+j}, v{d+j}, v{GT+tt}')
    A(f'''
s_lshl_b32 s47, s{S_H}, 7
s_add_u32 s47, s47, {F_CH}
s_add_u32 s46, s54, 1
''')
    poll_ge(A, 47, 46, vt=T)
    stamp(A, 8, sidx=56)
    A(f'''
s_lshl_b32 s50, s54, 16
s_lshl_b32 s51, s{S_H}, 11
s_add_u32 s50, s50, s51
s_and_b32 s51, s{S_WAVE}, 1
s_lshl_b32 s51, s51, 10
s_add_u32 s50, s50, s51
s_cmp_lt_u32 s{S_WAVE}, 2
s_mov_b32 s51, {VM}
s_mov_b32 s52, {KM}
s_cselect_b32 s51, s52, s51
s_add_u32 s50, s50, s51
s_add_u32 s50, s{S_WS}, s50
s_addc_u32 s51, s{S_WS+1}, 0
s_lshl_b32 s46, s{S_WAVE}, 10
s_add_u32 s46, s46, s55
s_add_u32 m0, s46, 16384
s_nop 0
global_load_lds_dwordx4 v{V_LN16}, s[50:51] sc1
s_waitcnt vmcnt(0)
s_barrier
''')
    QB = 56
    KA = 72
    KMA = 104
    TT = 120
    AD = 132
    A(f'''
v_add_u32 v{AD}, s55, v{V_LN16}
v_add_u32 v{AD+1}, s55, v{V_KMR}
v_add_u32 v{AD+2}, s55, v{V_VAR}
v_add_u32 v{AD+3}, s55, v{V_VMR}
''')
    for kp in range(4):
        A(f'ds_read_b128 v[{QB+4*kp}:{QB+4*kp+3}], v{V_QXR} offset:{kp*2048}')
        A(f'ds_read_b128 v[{KMA+4*kp}:{KMA+4*kp+3}], v{AD+1} offset:{kp*512}')
        for t_ in range(2):
            d = KA + (kp * 2 + t_) * 4
            A(f'ds_read_b128 v[{d}:{d+3}], v{AD} offset:{(kp*2+t_)*1024}')
    A('s_waitcnt lgkmcnt(0)')
    for kp in range(4):
        q = f'v[{QB+4*kp}:{QB+4*kp+3}]'
        c0 = f'v[{BT0}:{BT0+3}]' if kp == 0 else f'v[{TT}:{TT+3}]'
        A(f'v_mfma_f32_16x16x32_bf16 v[{TT}:{TT+3}], v[{KMA+4*kp}:{KMA+4*kp+3}], {q}, {c0}')
        for t_ in range(2):
            d = TT + 4 + 4 * t_
            B = BT1 if t_ == 0 else BT2
            ka = KA + (kp * 2 + t_) * 4
            cc = f'v[{B}:{B+3}]' if kp == 0 else f'v[{d}:{d+3}]'
            A(f'v_mfma_f32_16x16x32_bf16 v[{d}:{d+3}], v[{ka}:{ka+3}], {q}, {cc}')
    VA = 40
    VA = QB; VMA = 48
    for wq in range(2):
        for te in range(2):
            d = VA + (wq * 2 + te) * 4
            A(f'ds_read_b128 v[{d}:{d+3}], v{AD+2} offset:{(wq*2+te)*1024}')
        A(f'ds_read_b64 v[{VMA+2*wq}:{VMA+2*wq+1}], v{AD+3} offset:{wq*512}')
    M = 132; M2 = 133; MC = 134; PX = 72; PM = 76; BB = 78
    cexp = 128 ** -0.5 * 1.4426950408889634
    t = [TT + i for i in range(12)]
    A(f'''
s_mov_b32 s46, {fbits(cexp)}
v_max3_f32 v{M}, v{t[4]}, v{t[5]}, v{t[6]}
v_max3_f32 v{M}, v{M}, v{t[7]}, v{t[8]}
v_max3_f32 v{M}, v{M}, v{t[9]}, v{t[10]}
v_max3_f32 v{M}, v{M}, v{t[11]}, v{t[0]}
v_max3_f32 v{M}, v{M}, v{t[1]}, v{t[2]}
v_max_f32 v{M}, v{M}, v{t[3]}
v_mov_b32 v{M2}, v{M}
v_permlane32_swap_b32 v{M}, v{M2}
v_max_f32 v{M}, v{M}, v{M2}
v_mov_b32 v{M2}, v{M}
v_permlane16_swap_b32 v{M}, v{M2}
v_max_f32 v{M}, v{M}, v{M2}
v_mul_f32 v{MC}, s46, v{M}
v_sub_f32 v{MC}, 0, v{MC}
''')
    for i_ in range(12): A(f'v_fma_f32 v{t[i_]}, v{t[i_]}, s46, v{MC}')
    for i_ in range(12): A(f'v_exp_f32 v{t[i_]}, v{t[i_]}')
    A(f'''
v_cvt_pk_bf16_f32 v{PX}, v{t[4]}, v{t[5]}
v_cvt_pk_bf16_f32 v{PX+1}, v{t[6]}, v{t[7]}
v_cvt_pk_bf16_f32 v{PX+2}, v{t[8]}, v{t[9]}
v_cvt_pk_bf16_f32 v{PX+3}, v{t[10]}, v{t[11]}
v_cvt_pk_bf16_f32 v{PM}, v{t[0]}, v{t[1]}
v_cvt_pk_bf16_f32 v{PM+1}, v{t[2]}, v{t[3]}
v_mov_b32 v{t[0]}, v{PM}
v_mov_b32 v{t[1]}, v{PM+1}
v_mov_b32 v{BB}, 0
v_mov_b32 v{BB+1}, 0
v_permlane32_swap_b32 v{BB}, v{t[0]}
v_permlane32_swap_b32 v{BB+1}, v{t[1]}
s_waitcnt lgkmcnt(0)
''')
    O = 80
    LL = 96
    for wq in range(2):
        for te in range(2):
            d = O + (wq * 2 + te) * 4
            va = VA + (wq * 2 + te) * 4
            A(f'v_mfma_f32_16x16x32_bf16 v[{d}:{d+3}], v[{va}:{va+3}], v[{PX}:{PX+3}], 0')
    A(f'v_mfma_f32_16x16x32_bf16 v[{LL}:{LL+3}], v[{ONES}:{ONES+3}], v[{PX}:{PX+3}], 0')
    for wq in range(2):
        for te in range(2):
            d = O + (wq * 2 + te) * 4
            B = PM if te == 0 else BB
            A(f'v_mfma_f32_16x16x16_bf16 v[{d}:{d+3}], v[{VMA+2*wq}:{VMA+2*wq+1}], v[{B}:{B+1}], v[{d}:{d+3}]')
    A(f'v_mfma_f32_16x16x16_bf16 v[{LL}:{LL+3}], v[{ONES}:{ONES+1}], v[{PM}:{PM+1}], v[{LL}:{LL+3}]')
    A(f'v_rcp_f32 v{LL}, v{LL}')
    A(f'v_mul_f32 v{LL}, v{LL}, v{GQ}')
    for i_ in range(16): A(f'v_mul_f32 v{O+i_}, v{O+i_}, v{LL}')
    for wq in range(2):
        p = 100 + 4 * wq
        for te in range(2):
            d = O + (wq * 2 + te) * 4
            A(f'v_cvt_pk_bf16_f32 v{p+2*te}, v{d}, v{d+1}')
            A(f'v_cvt_pk_bf16_f32 v{p+2*te+1}, v{d+2}, v{d+3}')
        A(f'ds_write_b128 v{V_OXW}, v[{p}:{p+3}] offset:{wq*1024}')
    A('s_waitcnt lgkmcnt(0)\ns_barrier')
    OBR = 56
    for tq in range(2):
        for kp in range(4):
            d = OBR + (tq * 4 + kp) * 4
            A(f'ds_read_b128 v[{d}:{d+3}], v{V_OXR} offset:{(tq*4+kp)*1024}')
    A('s_waitcnt lgkmcnt(0)')
    for kp in range(4):
        for cp in range(4):
            for u in range(2):
                w = 128 + ((cp * 2 + u) * 4 + kp) * 4
                for tq in range(2):
                    d = acc(cp, u, tq)
                    ob = OBR + (tq * 4 + kp) * 4
                    A(f'v_mfma_f32_16x16x32_bf16 v[{d}:{d+3}], a[{w}:{w+3}], v[{ob}:{ob+3}], v[{d}:{d+3}]')
    PK = 88
    for tq in range(2):
        for cp in range(4):
            p = PK + (tq * 4 + cp) * 4
            for u in range(2):
                d = acc(cp, u, tq)
                A(f'v_cvt_pk_bf16_f32 v{p+2*u}, v{d}, v{d+1}')
                A(f'v_cvt_pk_bf16_f32 v{p+2*u+1}, v{d+2}, v{d+3}')
    A(f'''
s_lshl_b32 s50, s54, 20
s_add_u32 s50, s50, {PART}
s_add_u32 s50, s{S_WS}, s50
s_addc_u32 s51, s{S_WS+1}, 0
''')
    for tq in range(2):
        for cp in range(4):
            p = PK + (tq * 4 + cp) * 4
            off = tq * 0x80000 + cp * 0x8000
            A(f's_add_u32 s52, s50, {off}\ns_addc_u32 s53, s51, 0')
            A(f'global_store_dwordx4 v{V_PS}, v[{p}:{p+3}], s[52:53] sc1')
    A(f'''
s_add_u32 s56, s56, 1
s_waitcnt vmcnt(0)
s_barrier
s_cmp_eq_u32 s{S_WAVE}, 0
s_cbranch_scc0 L_o_noflag
s_lshl_b32 s34, s{S_RHO}, 7
s_lshl_b32 s35, s{S_H}, 2
s_add_u32 s34, s34, s35
s_add_u32 s34, s34, {F_OUT}
v_mov_b32 v{T}, s34
v_mov_b32 v{T+1}, s56
v_cmp_eq_u32 vcc, 0, v0
s_and_saveexec_b64 s[36:37], vcc
global_store_dword v{T}, v{T+1}, {SP(S_WS)} sc1
s_mov_b64 exec, s[36:37]
L_o_noflag:
''')
    stamp(A, 32, sidx=56)
    def reduce(A, s_seg, s_cnt, tag):
        RB = 56; RA = 88
        A(f'''
s_lshl_b32 s34, s{S_RHO}, 7
s_add_u32 s34, s34, {F_OUT}
v_and_b32 v{T}, 31, v0
v_lshlrev_b32 v{T}, 2, v{T}
v_add_u32 v{T}, s34, v{T}
s_mov_b32 s45, 0
L_o_rp{tag}:
global_load_dword v{T+1}, v{T}, {SP(S_WS)} sc1
s_add_u32 s45, s45, 1
s_waitcnt vmcnt(0)
v_cmp_gt_u32 vcc, s{s_cnt}, v{T+1}
s_cbranch_vccz L_o_rok{tag}
s_cmp_lt_u32 s45, 300000
s_cbranch_scc1 L_o_rp{tag}
L_o_rok{tag}:
s_lshl_b32 s50, s{s_seg}, 20
s_add_u32 s50, s50, {PART}
s_add_u32 s50, s{S_WS}, s50
s_addc_u32 s51, s{S_WS+1}, 0
''')
        for i_ in range(8):
            A(f'global_load_dwordx4 v[{RB+4*i_}:{RB+4*i_+3}], v{V_RL}, s[50:51] sc1')
            if i_ < 7: A('s_add_u32 s50, s50, 4096\ns_addc_u32 s51, s51, 0')
        for i_ in range(8):
            A(f's_waitcnt vmcnt({7-i_})')
            cc = '0' if i_ == 0 else f'v[{RA}:{RA+3}]'
            A(f'v_mfma_f32_16x16x32_bf16 v[{RA}:{RA+3}], v[{SELA}:{SELA+3}], v[{RB+4*i_}:{RB+4*i_+3}], {cc}')
        A(f'''
v_cvt_pk_bf16_f32 v{RA}, v{RA}, v{RA+1}
v_cvt_pk_bf16_f32 v{RA+1}, v{RA+2}, v{RA+3}
s_lshl_b32 s50, s{s_seg}, 15
s_add_u32 s50, s{S_OUT}, s50
s_addc_u32 s51, s{S_OUT+1}, 0
s_mov_b64 exec, s[60:61]
global_store_dwordx2 v{V_OS}, v[{RA}:{RA+1}], s[50:51]
s_mov_b64 exec, -1
''')
    A('s_cmp_lt_u32 s56, 2\ns_cbranch_scc1 L_o_nored')
    A('s_sub_u32 s78, s54, 4\ns_sub_u32 s79, s56, 1')
    reduce(A, 78, 79, 'a')
    A('L_o_nored:')
    A('''
s_mov_b32 s59, s54
s_mov_b32 s54, s57
s_mov_b32 s55, s58
s_cmp_lt_u32 s54, 64
s_cbranch_scc1 L_o_loop
''')
    reduce(A, 59, 56, 'b')
    A('s_waitcnt vmcnt(0)')
    stamp(A, 60)
    A('s_endpgm')
```

```python
import sys, os
sys.path.insert(0, os.path.dirname(os.path.abspath(__file__)))
from asmlib import *

KNAME = 'gated_mix__memory_aug_recurrent_mem_tr__dense_activation_silu__prompt_kernel'

F_KV   = 0x0000
F_CH   = 0x1000
F_OUT  = 0x2000
HOPA   = 0x10000
HOPB   = 0x90000
POISON_BASE = 0x10000
POISON_PER_WG = 2304
KX     = 0x100000
VX     = 0x1100000
KM     = 0x2100000
VM     = 0x2500000
PART   = 0x4000000
PROF   = 0x3000000

S_X, S_MEM0, S_WQ, S_WK, S_WV, S_WO, S_W1, S_W2, S_GW, S_OUT, S_DBG, S_WS = 4, 6, 8, 10, 12, 14, 16, 18, 20, 22, 24, 26
S_XCC, S_WAVE, S_G, S_SAFE, S_H, S_RHO = 28, 29, 30, 31, 32, 33
S_T0 = 34
SP = lambda b: f's[{b}:{b+1}]'

CFG = {}
STV = [253, 254]
def stamp(A, idx, sidx=None, saved=None):
    if not CFG.get('prof'): return
    L = A.newlabel('L_st')
    A(f'''
s_cmp_eq_u32 s{S_WAVE}, 0
s_cbranch_scc0 {L}
{"s_memrealtime s[90:91]" if saved is None else f"s_mov_b32 s90, s{saved}"}
s_and_b32 s92, s{S_G}, 255
s_lshl_b32 s92, s92, 12
s_add_u32 s92, s92, {PROF + 4*idx}
''')
    if sidx is not None:
        A(f's_lshl_b32 s93, s{sidx}, 2\ns_add_u32 s92, s92, s93')
    A(f'''
v_mov_b32 v{STV[0]}, s92
s_waitcnt lgkmcnt(0)
v_mov_b32 v{STV[1]}, s90
global_store_dword v{STV[0]}, v{STV[1]}, {SP(S_WS)}
{L}:
''')

def header(A, lds):
    ref = open('gated_mix__memory_aug_recurrent_mem_tr__dense_activation_silu__prompt.s.ref').read().split('\n')
    for l in ref:
        if l.startswith('; @launch'): break
        if l.startswith(';'): A.L.append(l)
    A(f'; @launch grid=(256,1,1) block=(256,1,1) lds={lds}')
    A('.amdgcn_target "amdgcn-amd-amdhsa--gfx950"')
    A('.text')
    A(f'.globl {KNAME}')
    A('.p2align 8')
    A(f'.type {KNAME},@function')
    A(f'{KNAME}:')

def footer(A):
    A('.section .rodata,"a"')
    A('.p2align 6')
    A(f'.amdhsa_kernel {KNAME}')
    A('''.amdhsa_next_free_vgpr 512
.amdhsa_next_free_sgpr 102
.amdhsa_accum_offset 256
.amdhsa_group_segment_fixed_size 0
.amdhsa_kernarg_size 112
.amdhsa_user_sgpr_count 2
.amdhsa_user_sgpr_kernarg_segment_ptr 1
.amdhsa_system_sgpr_workgroup_id_x 1
.end_amdhsa_kernel''')

LDS_MISC = 163840 - 64

def startup(A, cfg):
    A(f'''
s_cmp_ge_u32 s2, 256
s_cbranch_scc1 L_exit
s_load_dwordx4 s[4:7], s[0:1], 0
s_load_dwordx4 s[8:11], s[0:1], 16
s_load_dwordx4 s[12:15], s[0:1], 32
s_load_dwordx4 s[16:19], s[0:1], 64
s_load_dwordx4 s[20:23], s[0:1], 80
s_load_dwordx4 s[24:27], s[0:1], 96
{"s_memrealtime s[96:97]" if cfg.get("prof") else ""}
s_getreg_b32 s{S_XCC}, hwreg(HW_REG_XCC_ID, 0, 4)
v_lshrrev_b32 v1, 6, v0
v_mov_b32 v255, v0
s_and_b32 s{S_XCC}, s{S_XCC}, 7
v_readfirstlane_b32 s{S_WAVE}, v1
v_and_b32 v0, 63, v0
s_mov_b32 s{S_SAFE}, 0
s_waitcnt lgkmcnt(0)
''')
    A(f'''
s_cmp_eq_u32 s{S_WAVE}, 0
s_cbranch_scc0 L_noticket
s_lshl_b32 s34, s{S_XCC}, 2
v_mov_b32 v1, s34
v_mov_b32 v2, 1
v_cmp_eq_u32 vcc, 0, v0
s_and_saveexec_b64 s[36:37], vcc
global_atomic_add v3, v1, v2, {SP(S_DBG)} sc0
s_mov_b64 exec, s[36:37]
L_noticket:
''')
    A(f'''
s_mul_i32 s34, s2, {POISON_PER_WG}
s_add_u32 s34, s34, {POISON_BASE}
v_lshlrev_b32 v4, 4, v255
v_add_u32 v5, s34, v4
v_mov_b32 v8, -1
v_mov_b32 v9, -1
v_mov_b32 v10, -1
v_mov_b32 v11, -1
v_cmp_gt_u32 vcc, {POISON_PER_WG//16}, v255
s_and_saveexec_b64 s[36:37], vcc
global_store_dwordx4 v5, v[8:11], {SP(S_WS)} sc1
s_mov_b64 exec, s[36:37]
s_lshl_b32 s34, s2, 7
v_add_u32 v5, s34, v4
v_mov_b32 v12, 0
v_mov_b32 v13, 0
v_mov_b32 v14, 0
v_mov_b32 v15, 0
v_cmp_gt_u32 vcc, 8, v255
s_and_saveexec_b64 s[36:37], vcc
global_store_dwordx4 v5, v[12:15], {SP(S_WS)} sc1
s_mov_b64 exec, s[36:37]
s_cmp_eq_u32 s{S_WAVE}, 0
s_cbranch_scc0 L_notick2
s_waitcnt vmcnt(2)
v_mov_b32 v6, {LDS_MISC}
v_cmp_eq_u32 vcc, 0, v0
s_and_saveexec_b64 s[36:37], vcc
ds_write_b32 v6, v3
s_mov_b64 exec, s[36:37]
s_waitcnt lgkmcnt(0)
L_notick2:
s_barrier
v_mov_b32 v6, {LDS_MISC}
ds_read_b32 v3, v6
s_waitcnt lgkmcnt(0)
v_readfirstlane_b32 s35, v3
s_lshl_b32 s{S_G}, s{S_XCC}, 5
s_add_u32 s{S_G}, s{S_G}, s35
s_mov_b32 s40, 0
s_cmp_ge_u32 s35, 32
s_cbranch_scc0 L_rank_ok
s_mov_b32 s{S_G}, 0x7fffffff
L_rank_ok:
s_waitcnt vmcnt(0)
s_barrier
s_cmp_eq_u32 s{S_WAVE}, 0
s_cbranch_scc0 L_noarrive
v_mov_b32 v1, 32
v_mov_b32 v2, 1
v_cmp_eq_u32 vcc, 0, v0
s_and_saveexec_b64 s[36:37], vcc
global_atomic_add v1, v2, {SP(S_DBG)}
s_mov_b64 exec, s[36:37]
L_noarrive:
s_mov_b32 s41, s35
''')
    stamp(A, 0, saved=96)
    stamp(A, 1)
    A(f'''
L_dispatch:
s_cmp_lt_u32 s{S_G}, 32
s_cbranch_scc1 L_chain_pro
s_cmp_lt_u32 s{S_G}, 128
s_cbranch_scc1 L_kv_pro
s_cmp_lt_u32 s{S_G}, 256
s_cbranch_scc1 L_out_pro
''')
    A('s_branch L_invalid')

def startbar(A, tag, va=250, vb=251):
    A(f'''
s_cmp_eq_u32 s40, 1
s_cbranch_scc1 L_checked_{tag}
s_mov_b32 s40, 1
s_mov_b32 s43, 0
v_lshlrev_b32 v{va}, 2, v0
L_sb_poll_{tag}:
global_load_dword v{vb}, v{va}, {SP(S_DBG)} sc1
s_add_u32 s43, s43, 1
s_waitcnt vmcnt(0)
v_readlane_b32 s34, v{vb}, 8
s_cmp_eq_u32 s34, 256
s_cbranch_scc1 L_sb_done_{tag}
s_cmp_lt_u32 s43, 400000
s_cbranch_scc1 L_sb_poll_{tag}
L_sb_done_{tag}:
global_load_dword v{vb}, v{va}, {SP(S_DBG)} sc1
s_waitcnt vmcnt(0)
s_mov_b32 s44, 0          ; prefix
s_mov_b32 s45, 0
''')
    for x in range(8):
        A(f'''
v_readlane_b32 s34, v{vb}, {x}
s_cmp_eq_u32 s34, 32
s_cselect_b32 s46, 0, 1
s_or_b32 s45, s45, s46
s_cmp_lt_u32 {x}, s{S_XCC}
s_cselect_b32 s46, s34, 0
s_add_u32 s44, s44, s46
''')
    A(f'''
s_cmp_eq_u32 s45, 0
s_cbranch_scc1 L_checked_{tag}
s_mov_b32 s{S_SAFE}, 1
s_add_u32 s{S_G}, s44, s41
s_branch L_dispatch
L_checked_{tag}:
''')

STG_ROW = 288
STG_SZ = 32 * STG_ROW
def load_weights(A, chunks, stg_base, land_base, depth, v_go0, v_go1, v_lw, tr_emit, s_base=48):
    n = len(chunks)
    def issue(c):
        ch = chunks[c]
        ch['setup'](A)
        g0, g1 = ch.get('go', (v_go0, v_go1))
        r = land_base + 8 * (c % depth)
        A(f'global_load_dwordx4 v[{r}:{r+3}], v{g0}, s[{s_base}:{s_base+1}]')
        A(f'global_load_dwordx4 v[{r+4}:{r+7}], v{g1}, s[{s_base}:{s_base+1}]')
    for c in range(min(depth, n)): issue(c)
    for c in range(n):
        outstanding_after = min(n, c + depth) - (c + 1)
        A(f's_waitcnt vmcnt({2*outstanding_after})')
        r = land_base + 8 * (c % depth)
        bo = stg_base + (c & 1) * STG_SZ
        A(f'ds_write_b128 v{v_lw}, v[{r}:{r+3}] offset:{bo}')
        A(f'ds_write_b128 v{v_lw}, v[{r+4}:{r+7}] offset:{bo + 4*STG_ROW}')
        if c + depth < n: issue(c + depth)
        A('s_waitcnt lgkmcnt(0)')
        A('s_barrier')
        tr_emit(A, c, bo)
    A('s_waitcnt lgkmcnt(0)')
    A('s_barrier')

def kv_role(A, cfg):
    XB0 = 20480; XBS = 33792
    V_LANE = 0; V_GO0 = 1; V_GO1 = 2; V_LW = 3; V_TR = 4; V_XG = 5; V_XR = 6; V_ST = 7; V_T = 8; V_T2 = 9
    XF = 16
    ACC = 48
    PK = 80
    LAND = 128
    A('L_kv_pro:')
    A(f'''
s_sub_u32 s34, s{S_G}, 32
s_mul_i32 s{S_H}, s34, 171
s_lshr_b32 s{S_H}, s{S_H}, 9
s_mul_i32 s35, s{S_H}, 3
s_sub_u32 s{S_RHO}, s34, s35
v_lshrrev_b32 v{V_T}, 4, v0           ; g
v_and_b32 v{V_T2}, 15, v0             ; n
s_lshl_b32 s34, s{S_WAVE}, 3
v_add_u32 v{V_GO0}, s34, v{V_T}
v_lshlrev_b32 v{V_GO0}, 13, v{V_GO0}
v_lshlrev_b32 v10, 4, v{V_T2}
v_add_u32 v{V_GO0}, v{V_GO0}, v10
v_add_u32 v{V_GO1}, 0x8000, v{V_GO0}
v_add_u32 v{V_LW}, s34, v{V_T}
v_mul_u32_u24 v{V_LW}, {STG_ROW}, v{V_LW}
v_add_u32 v{V_LW}, v{V_LW}, v10
v_lshlrev_b32 v11, 3, v{V_T}
v_lshrrev_b32 v12, 2, v{V_T2}
v_add_u32 v11, v11, v12
v_mul_u32_u24 v{V_TR}, {STG_ROW}, v11
v_and_b32 v12, 3, v{V_T2}
v_lshlrev_b32 v12, 3, v12
s_lshl_b32 s34, s{S_WAVE}, 6
v_add_u32 v12, s34, v12
v_add_u32 v{V_TR}, v{V_TR}, v12
v_lshlrev_b32 v{V_XG}, 4, v0
s_lshl_b32 s34, s{S_WAVE}, 13
v_add_u32 v{V_XG}, s34, v{V_XG}
v_mul_u32_u24 v{V_XR}, 1056, v{V_T2}
v_lshlrev_b32 v12, 4, v{V_T}
v_add_u32 v{V_XR}, v{V_XR}, v12
s_lshl_b32 s34, s{S_H}, 13
s_lshl_b32 s35, s{S_WAVE}, 11
s_add_u32 s34, s34, s35
v_lshlrev_b32 v{V_ST}, 4, v0
v_add_u32 v{V_ST}, s34, v{V_ST}
''')
    def xdma(A, s_seg, s_buf):
        A(f'''
s_lshl_b32 s50, s{s_seg}, 15
s_add_u32 s50, s{S_X}, s50
s_addc_u32 s51, s{S_X+1}, 0
s_mul_i32 s52, s{S_WAVE}, {8*1056}
s_add_u32 s52, s52, s{s_buf}
''')
        for r in range(8):
            if r == 4:
                A('s_add_u32 s50, s50, 4096\ns_addc_u32 s51, s51, 0')
            A(f's_add_u32 m0, s52, {r*1056 - 1024*(r&3)}')
            A(f'global_load_lds_dwordx4 v{V_XG}, s[50:51] offset:{1024*(r&3)}')
    A(f's_mov_b32 s54, s{S_RHO}        ; segment')
    A(f's_mov_b32 s55, {XB0}')
    xdma(A, 54, 55)
    chunks = []
    for c in range(32):
        def setup(A, c=c):
            if c % 16 == 0:
                W = S_WK if c == 0 else S_WV
                A(f's_lshl_b32 s46, s{S_H}, 8\ns_add_u32 s48, s{W}, s46\ns_addc_u32 s49, s{W+1}, 0')
            else:
                A('s_add_u32 s48, s48, 0x40000\ns_addc_u32 s49, s49, 0')
        chunks.append(dict(setup=setup))
    def tr(A, c, bo):
        mat = c // 16; kk = c % 16
        for te in range(2):
            for q in range(2):
                d = mat * 128 + (te * 16 + kk) * 4 + 2 * q
                A(f'ds_read_b64_tr_b16 a[{d}:{d+1}], v{V_TR} offset:{bo + q*4*STG_ROW + te*32}')
    load_weights(A, chunks, 0, LAND, 12, V_GO0, V_GO1, V_LW, tr)
    stamp(A, 2)
    startbar(A, 'kv')
    stamp(A, 3)
    A('s_mov_b32 s56, 0               ; count')
    A('L_kv_loop:')
    A(f's_add_u32 s57, s54, 3')
    A(f's_xor_b32 s58, s55, {XB0 ^ (XB0 + XBS)}')
    A('s_cmp_lt_u32 s57, 64')
    A('s_cbranch_scc0 L_kv_nopf')
    xdma(A, 57, 58)
    A('L_kv_nopf:')
    A(f'v_add_u32 v{V_T}, s55, v{V_XR}')
    NS = 4
    def rd(kk):
        sl = kk % NS
        for tt in range(2):
            r = XF + (sl * 2 + tt) * 4
            A(f'ds_read_b128 v[{r}:{r+3}], v{V_T} offset:{tt*16*1056 + kk*64}')
    for kk in range(NS - 1): rd(kk)
    for kk in range(16):
        if kk + NS - 1 < 16: rd(kk + NS - 1)
        rem = min(16, kk + NS) - (kk + 1)
        A(f's_waitcnt lgkmcnt({2*rem})')
        sl = kk % NS
        for te in range(2):
            for tt in range(2):
                xf = XF + (sl * 2 + tt) * 4
                d = ACC + (te * 2 + tt) * 4
                wk = (te * 16 + kk) * 4
                c = '0' if kk == 0 else f'v[{d}:{d+3}]'
                A(f'v_mfma_f32_16x16x32_bf16 v[{d}:{d+3}], a[{wk}:{wk+3}], v[{xf}:{xf+3}], {c}')
        for tt in range(2):
            for te in range(2):
                xf = XF + (sl * 2 + tt) * 4
                d = ACC + 16 + (tt * 2 + te) * 4
                wv = 128 + (te * 16 + kk) * 4
                c = '0' if kk == 0 else f'v[{d}:{d+3}]'
                A(f'v_mfma_f32_16x16x32_bf16 v[{d}:{d+3}], v[{xf}:{xf+3}], a[{wv}:{wv+3}], {c}')
    for tt in range(2):
        for te in range(2):
            d = ACC + (te * 2 + tt) * 4
            p = PK + tt * 4 + te * 2
            A(f'v_cvt_pk_bf16_f32 v{p}, v{d}, v{d+1}')
            A(f'v_cvt_pk_bf16_f32 v{p+1}, v{d+2}, v{d+3}')
    for te in range(2):
        for tt in range(2):
            d = ACC + 16 + (tt * 2 + te) * 4
            p = PK + 8 + te * 4 + tt * 2
            A(f'v_cvt_pk_bf16_f32 v{p}, v{d}, v{d+1}')
            A(f'v_cvt_pk_bf16_f32 v{p+1}, v{d+2}, v{d+3}')
    A(f'''
s_lshl_b32 s50, s54, 18
s_add_u32 s50, s50, {KX}
s_add_u32 s50, s{S_WS}, s50
s_addc_u32 s51, s{S_WS+1}, 0
s_add_u32 s52, s50, {VX-KX}
s_addc_u32 s53, s51, 0
global_store_dwordx4 v{V_ST}, v[{PK}:{PK+3}], s[50:51] sc1
global_store_dwordx4 v{V_ST}, v[{PK+4}:{PK+7}], s[50:51] offset:1024 sc1
global_store_dwordx4 v{V_ST}, v[{PK+8}:{PK+11}], s[52:53] sc1
global_store_dwordx4 v{V_ST}, v[{PK+12}:{PK+15}], s[52:53] offset:1024 sc1
s_add_u32 s56, s56, 1
s_waitcnt vmcnt(0)
s_barrier
s_cmp_eq_u32 s{S_WAVE}, 0
s_cbranch_scc0 L_kv_noflag
s_lshl_b32 s34, s{S_H}, 7
s_lshl_b32 s35, s{S_RHO}, 2
s_add_u32 s34, s34, s35
s_add_u32 s34, s34, {F_KV}
v_mov_b32 v{V_T}, s34
v_mov_b32 v{V_T2}, s56
v_cmp_eq_u32 vcc, 0, v0
s_and_saveexec_b64 s[36:37], vcc
global_store_dword v{V_T}, v{V_T2}, {SP(S_WS)} sc1
s_mov_b64 exec, s[36:37]
L_kv_noflag:
''')
    stamp(A, 4, sidx=56)
    A(f'''
s_mov_b32 s54, s57
s_mov_b32 s55, s58
s_cmp_lt_u32 s54, 64
s_cbranch_scc1 L_kv_loop
s_waitcnt vmcnt(0)
s_endpgm
''')

def stub_role(A, name):
    A(f'L_{name}_pro:')
    startbar(A, name)
    A('s_endpgm')

def gen(cfg):
    CFG.update(cfg)
    A = Asm()
    header(A, 163840)
    startup(A, cfg)
    if cfg.get('kv', 1): kv_role(A, cfg)
    else: stub_role(A, 'kv')
    if cfg.get('chain', 1):
        import chain; chain.chain_role(A, cfg)
    else: stub_role(A, 'chain')
    if cfg.get('out', 1):
        import outrole; outrole.out_role(A, cfg)
    else: stub_role(A, 'out')
    A('L_invalid:')
    startbar(A, 'inv')
    A('L_exit:')
    A('s_endpgm')
    hdr = []
    body = []
    lines = A.L
    k = lines.index(f'{KNAME}:')
    code = fix_hazards(lines[k+1:], verbose=True)
    F = Asm(); footer(F)
    return '\n'.join(lines[:k+1] + code + F.L) + '\n'

def main(argv):
    cfg = {}
    for a in argv[2:]:
        k, v = a.split('='); cfg[k] = int(v)
    txt = gen(cfg)
    open(argv[1], 'w').write(txt)
    print('written', argv[1], len(txt), 'bytes')

if __name__ == '__main__':
    import gen as _g
    _g.main(sys.argv)
```
